```python
import torch

def _softmax(x, axis=-1):
    return torch.softmax(x, dim=axis)
def _gelu(x):
    return torch.nn.functional.gelu(x, approximate="tanh")
def _silu(x):
    return torch.nn.functional.silu(x)
def _sigmoid(x):
    return torch.sigmoid(x)
def _layernorm(x, axis=-1, eps=1e-5):
    m = x.mean(dim=axis, keepdim=True)
    v = x.var(dim=axis, keepdim=True, unbiased=False)
    return (x - m) / torch.sqrt(v + eps)
def _scatter_add(tgt, idx, src, axis=0):
    return tgt.clone().index_add_(axis, idx, src)
def _segment_sum(src, seg, n):
    out = torch.zeros((n,) + src.shape[1:], dtype=src.dtype)
    return out.index_add_(0, seg, src)
def _pad(x, pw):
    flat = tuple(v for pair in reversed(pw) for v in pair)
    return torch.nn.functional.pad(x, flat)

kernel_name = 'concat_heads__linear_attn_block__ssm_conv_s4d__prompt'

def setup_inputs():

    _w = (lambda a: (lambda t: t.to(torch.bfloat16) if t.is_floating_point() else t)(torch.as_tensor(a)))
    def _A_setup():
        B, S, D = 1, 2048, 512
        return {
            "x": _w((lambda *s: torch.randn(*s, dtype=torch.bfloat16) * 0.05)(B, S, D)),
            "wqkv": _w((lambda *s: torch.randn(*s, dtype=torch.bfloat16) * 0.4)(D, 3 * D)),
            "wo": _w((lambda *s: torch.randn(*s, dtype=torch.bfloat16) * 0.05)(D, D)),
        }
    _A_in = _A_setup()

    def _B_setup():
        Bsz, L, D, N = 1, 2048, 512, 128
        return {
            "u": _w((lambda *s: torch.randn(*s, dtype=torch.bfloat16) * 0.05)(Bsz, L, D)),
            "log_A_real": _w((lambda *s: torch.randn(*s, dtype=torch.bfloat16) * 6.4)(D, N) * 0.5),
            "A_imag": _w((lambda *s: torch.randn(*s, dtype=torch.bfloat16) * 0.05)(D, N) * 3.14),
            "C_real": _w((lambda *s: torch.randn(*s, dtype=torch.bfloat16) * 0.1)(D, N) / N ** 0.5),
            "C_imag": _w((lambda *s: torch.randn(*s, dtype=torch.bfloat16) * 0.1)(D, N) / N ** 0.5),
            "log_dt": _w((lambda *s: torch.randn(*s, dtype=torch.bfloat16) * 0.05)(D) * 0.5 - 4.0),
            "D_skip": _w((lambda *s: torch.randn(*s, dtype=torch.bfloat16) * 0.05)(D)),
        }
    _B_in = _B_setup()

    return {
        "A_x": _A_in["x"],
        "A_wqkv": _A_in["wqkv"],
        "A_wo": _A_in["wo"],
        "B_u": _B_in["u"],
        "B_log_A_real": _B_in["log_A_real"],
        "B_A_imag": _B_in["A_imag"],
        "B_C_real": _B_in["C_real"],
        "B_C_imag": _B_in["C_imag"],
        "B_log_dt": _B_in["log_dt"],
        "B_D_skip": _B_in["D_skip"],
    }

def reference(A_x, A_wqkv, A_wo, B_u, B_log_A_real, B_A_imag, B_C_real, B_C_imag, B_log_dt, B_D_skip):
    def _A_ref(x, wqkv, wo):
        B, S, D = x.shape
        H = 32; Dh = D // H
        qkv = (lambda x, *d: x.permute(*d))((x @ wqkv).reshape(B, S, 3, H, Dh), 2, 0, 3, 1, 4)
        q, k, v = qkv[0], qkv[1], qkv[2]
        phi = lambda t: torch.where(t > 0, t + 1, torch.exp(t)) + 1e-6
        pq, pk = phi(q), phi(k)
        kv = torch.einsum("bhsd,bhse->bhde", pk, v)
        z = torch.einsum("bhsd->bhd", pk)
        num = torch.einsum("bhqd,bhde->bhqe", pq, kv)
        den = torch.einsum("bhqd,bhd->bhq", pq, z)[..., None] + 1e-6
        o = num / den
        return (lambda x, *d: x.permute(*d))(o, 0, 2, 1, 3).reshape(B, S, D) @ wo

    def _B_ref(u, log_A_real, A_imag, C_real, C_imag, log_dt, D_skip):
        L = u.shape[1]
        dt = torch.exp(log_dt)
        A = -torch.exp(log_A_real) + 1j * A_imag
        C = (C_real + 1j * C_imag) * dt[:, None]
        pos = (lambda x, dt: x.to(dt))(torch.arange(L), log_dt.dtype)
        P = torch.exp((A * dt[:, None])[:, :, None] * pos[None, None, :])
        K = 2.0 * torch.einsum("dn,dnl->dl", C, P).real
        L2 = 2 * L
        u_t = (lambda x, *d: x.permute(*d))(u, 0, 2, 1)
        Kf = (lambda x, *a, **k: torch.fft.rfft(x.float(), *a, **k))(K, L2)
        Uf = (lambda x, *a, **k: torch.fft.rfft(x.float(), *a, **k))(u_t, L2)
        y = (lambda x, *a, **k: torch.fft.irfft(x, *a, **k).to(torch.bfloat16))(Uf * Kf[None, :, :], L2)[:, :, :L]
        y = (lambda x, *d: x.permute(*d))(y, 0, 2, 1)
        return y + u * D_skip[None, None, :]

    a = _A_ref(A_x, A_wqkv, A_wo)
    b = _B_ref(B_u, B_log_A_real, B_A_imag, B_C_real, B_C_imag, B_log_dt, B_D_skip)
    return torch.concatenate([a, b], axis=-1)
```

```python
import re
TRANS = ("v_exp_f32", "v_rcp_f32", "v_sin_f32", "v_cos_f32", "v_log_f32", "v_rsq_f32", "v_sqrt_f32", "v_rcp_iflag_f32")
_reg = re.compile(r"^(-?)(abs\()?\|?([vsa])\[(\d+):(\d+)\]\|?\)?$|^(-?)(abs\()?\|?([vsa])(\d+)\|?\)?$")

def parse_reg(tok):
    tok = tok.strip()
    if tok in ("vcc", "exec", "m0", "vcc_lo", "vcc_hi", "exec_lo", "exec_hi", "scc"):
        base = tok.split("_")[0]
        return {("x", base)}
    m = _reg.match(tok)
    if not m:
        return set()
    if m.group(3):
        return {(m.group(3), i) for i in range(int(m.group(4)), int(m.group(5)) + 1)}
    return {(m.group(8), int(m.group(9)))}

class Ins:
    __slots__ = ("text", "mn", "kind", "w", "r", "rA", "rC", "passes", "states", "wide_store", "dma", "dpp")
    def __init__(self, text):
        self.text = text
        body = text.split(";")[0].strip()
        parts = body.split(None, 1)
        mn = parts[0]
        self.mn = mn
        rest = parts[1] if len(parts) > 1 else ""
        ops = [o.strip() for o in rest.split(",")]
        clean = []
        mods = []
        for o in ops:
            toks = o.split()
            if not toks:
                continue
            clean.append(toks[0])
            mods += toks[1:]
        self.w = set(); self.r = set(); self.rA = set(); self.rC = set()
        self.passes = 0; self.states = 1; self.wide_store = False; self.dma = False
        self.dpp = any(m.startswith(("row_", "quad_perm", "wave_", "row_newbcast")) for m in mods) or "dpp" in mn
        R = [parse_reg(c) for c in clean]
        def allr(lst):
            s = set()
            for x in lst: s |= x
            return s
        if mn == "s_nop":
            self.kind = "nop"; self.states = int(clean[0], 0) + 1
        elif mn.startswith("v_mfma"):
            self.kind = "mfma"
            self.passes = 8 if "32x32" in mn else 4
            self.w = R[0]; self.rA = R[1] | R[2]; self.rC = R[3] if len(R) > 3 else set()
            self.r = self.rA | self.rC
        elif mn.startswith("v_"):
            self.kind = "trans" if mn.split("_e")[0] in TRANS or mn in TRANS else "valu"
            if "permlane" in mn and "swap" in mn:
                self.w = R[0] | R[1]; self.r = R[0] | R[1]
            elif mn.startswith(("v_add_co", "v_sub_co", "v_addc_co", "v_subb_co", "v_subrev_co")):
                self.w = R[0] | R[1]; self.r = allr(R[2:])
            else:
                self.w = R[0]; self.r = allr(R[1:])
                if mn.startswith(("v_fmac", "v_pk_fmac", "v_writelane", "v_dot2c")) or "dst_unused:UNUSED_PRESERVE" in body or self.dpp:
                    self.r |= R[0]
                if mn.startswith("v_cmpx"):
                    self.w |= {("x", "exec")}
        elif mn.startswith("ds_"):
            self.kind = "ds"
            if mn.startswith(("ds_read", "ds_bpermute", "ds_permute", "ds_swizzle")) or "_rtn" in mn:
                self.w = R[0]; self.r = allr(R[1:])
                if "d16" in mn: self.r |= R[0]
            else:
                self.r = allr(R)
        elif mn.startswith(("buffer_", "global_", "flat_")):
            self.kind = "vmem"
            is_lds = "lds" in mods or "_lds_" in mn
            if "load" in mn and not is_lds:
                self.w = R[0]; self.r = allr(R[1:])
            elif "atomic" in mn and ("sc0" in mods):
                self.w = R[0]; self.r = allr(R)
            else:
                self.r = allr(R)
                if is_lds:
                    self.dma = True
                if "store" in mn and ("x4" in mn or "x3" in mn):
                    self.wide_store = True
                    self.rC = R[0] if mn.startswith("buffer_") else R[1]
        elif mn.startswith("s_"):
            self.kind = "salu"
            if mn.startswith(("s_cmp", "s_cbranch", "s_branch", "s_waitcnt", "s_barrier", "s_endpgm", "s_setprio", "s_sleep", "s_bitcmp")):
                self.r = allr(R)
            elif mn.startswith(("s_load", "s_buffer_load")):
                self.kind = "smem"; self.w = R[0]; self.r = allr(R[1:])
            else:
                self.w = R[0] if R else set(); self.r = allr(R[1:])
                if "saveexec" in mn: self.w |= {("x", "exec")}
        else:
            self.kind = "other"

def need(p, c):
    n = 0
    pv = {x for x in p.w if x[0] == "v"}
    ps = {x for x in p.w if x[0] in ("s", "x")}
    if p.kind in ("valu", "trans"):
        if c.kind == "mfma" and (pv & c.r): n = max(n, 2)
        if p.kind == "trans" and c.kind in ("valu", "mfma") and (pv & c.r): n = max(n, 1)
        if c.kind in ("valu", "trans"):
            if ps & c.r: n = max(n, 2)
            if ("readlane" in c.mn or "writelane" in c.mn) and (ps & c.r): n = max(n, 4)
            if ("readlane" in c.mn or "readfirstlane" in c.mn) and (pv & c.r): n = max(n, 1)
            if "permlane" in c.mn and (pv & c.r): n = max(n, 2)
            if c.dpp and (pv & c.r): n = max(n, 2)
            if ("x", "exec") in ps and (c.dpp): n = max(n, 5)
            if ("x", "exec") in ps and ("readlane" in c.mn or "readfirstlane" in c.mn or "permlane" in c.mn or "writelane" in c.mn): n = max(n, 4)
        if c.kind == "mfma" and ("x", "exec") in ps: n = max(n, 4)
        if c.kind in ("vmem",) and (ps & c.r): n = max(n, 5)
        if c.kind in ("salu", "smem") and (ps & c.r): n = max(n, 1)
        if "sdwa" in p.text or "op_sel" in p.text and not p.mn.startswith("v_pk"):
            if c.kind in ("valu", "trans", "mfma") and (pv & (c.r | c.w)): n = max(n, 1)
    if p.kind == "mfma":
        d = p.w
        big = 12 if p.passes == 8 else 8
        if c.kind == "mfma":
            if d & c.rA: n = max(n, big)
            if d & c.rC:
                if not (c.rC == d and c.passes == p.passes): n = max(n, 10 if p.passes == 8 else 6)
            elif d & c.w:
                n = max(n, 10 if p.passes == 8 else 6)
        elif c.kind in ("valu", "trans", "vmem", "ds"):
            if d & (c.r | c.w): n = max(n, big)
        if c.kind in ("valu", "trans") and (p.rC & c.w) and not (d & c.w):
            n = max(n, 7 if p.passes == 8 else 3)
    if p.kind == "salu" and ("x", "m0") in p.w and (c.dma or "addtid" in c.mn): n = max(n, 1)
    if p.wide_store and (p.rC & c.w):
        n = max(n, 2 if c.kind in ("valu", "trans") else 1)
    return n

class Prog:
    def __init__(self):
        self.items = []
    def I(self, text):
        for t in text.strip().split("\n"):
            t = t.strip()
            if not t or t.startswith(";"):
                continue
            self.items.append(Ins(t))
    def L(self, label):
        self.items.append(label + ":")
    def raw(self, text):
        self.items.append(text)
    def C(self, text):
        self.items.append("; " + text)
    def render(self):
        out = []
        hist = []
        nops = 0
        for it in self.items:
            if isinstance(it, str):
                out.append(it)
                continue
            dist = 0
            req = 0
            for p in reversed(hist):
                if dist >= 20: break
                nn = need(p, it)
                if nn > dist: req = max(req, nn - dist)
                dist += p.states
            while req > 0:
                k = min(req, 16)
                ni = Ins("s_nop %d" % (k - 1))
                hist.append(ni); out.append("    " + ni.text); req -= k; nops += 1
            hist.append(it)
            if len(hist) > 40: hist = hist[-30:]
            out.append("    " + it.text)
        self.nops = nops
        return "\n".join(out) + "\n"
```

```python
import sys, struct
sys.path.insert(0, 'work')
from asmlib import *

WS_PQ = 0x0
WS_KV = 0x200000
WS_KT = 0x300000
WS_UT = 0x800000
WS_SIZE = 0x1000000
KVREC = 1088
L2E = 1.4426950408889634
EPS = 1e-6
def f32(x): return "0x%08x" % struct.unpack("<I", struct.pack("<f", x))[0]

def srd(p, d, lo, size):
    p.I(f"""
s_mov_b32 s{d}, s{lo}
s_mov_b32 s{d+1}, s{lo+1}
s_mov_b32 s{d+2}, {hex(size)}
s_mov_b32 s{d+3}, 0x00020000""")

def srd_off(p, d, lo, off, size):
    p.I(f"""
s_add_u32 s{d}, s{lo}, {hex(off)}
s_addc_u32 s{d+1}, s{lo+1}, 0
s_mov_b32 s{d+2}, {hex(size)}
s_mov_b32 s{d+3}, 0x00020000""")

def load_args(p):
    p.I("""
s_load_dwordx16 s[16:31], s[0:1], 0
s_load_dwordx8 s[32:39], s[0:1], 64
s_load_dwordx2 s[40:41], s[0:1], 96""")
S_X, S_W, S_WO, S_U, S_LAR, S_AIM, S_CRE, S_CIM, S_LDT, S_DSK, S_OUT, S_DBG, S_WS = 16, 18, 20, 22, 24, 26, 28, 30, 32, 34, 36, 38, 40

class VM:
    def __init__(self): self.q = []
    def issue(self, tag, n=1): self.q += [tag] * n
    def wait_for(self, tags):
        last = -1
        for i, t in enumerate(self.q):
            if t in tags: last = i
        n = len(self.q) - 1 - last
        assert n <= 63
        return n

def phi_tile(p, acc, n, tmp, s_l2e, s_nel2e, s_eps, out):
    for i in range(0, n, 2):
        p.I(f"v_pk_fma_f32 v[{tmp+i}:{tmp+i+1}], v[{acc+i}:{acc+i+1}], s[{s_l2e}:{s_l2e+1}], v[{s_nel2e}:{s_nel2e+1}]")
    for i in range(n):
        p.I(f"v_exp_f32 v{tmp+i}, v{tmp+i} clamp")
        p.I(f"v_max_f32 v{acc+i}, s{s_eps}, v{acc+i}")
    for i in range(0, n, 2):
        p.I(f"v_pk_add_f32 v[{acc+i}:{acc+i+1}], v[{acc+i}:{acc+i+1}], v[{tmp+i}:{tmp+i+1}]")
    for i in range(0, n, 2):
        p.I(f"v_cvt_pk_bf16_f32 v{out+i//2}, v{acc+i}, v{acc+i+1}")

def gemm1(p):
    p.L("L_g1")
    p.I("""
s_and_b32 s3, s2, 7
s_lshr_b32 s4, s2, 3
s_lshr_b32 s5, s3, 1
s_and_b32 s6, s3, 1
s_and_b32 s7, s4, 3
s_lshl_b32 s8, s5, 2
s_add_u32 s8, s8, s7
s_lshr_b32 s9, s4, 2
s_lshl_b32 s10, s7, 1
s_add_u32 s10, s10, s9
s_and_b32 s10, s10, 7
v_lshrrev_b32 v1, 6, v0
v_and_b32 v2, 63, v0
s_nop 0
v_readfirstlane_b32 s13, v1
""")
    p.I("""
s_lshl_b32 s14, s6, 1
s_add_u32 s14, s14, s9
s_lshl_b32 s11, s14, 8
s_movk_i32 s12, 128
s_cmp_lt_u32 s9, 2
s_cbranch_scc1 L_g1_segdone
s_lshl_b32 s14, s6, 2
s_add_u32 s14, s14, s9
s_sub_u32 s14, s14, 2
s_lshl_b32 s11, s14, 7
s_add_u32 s11, s11, 1024
s_movk_i32 s12, 1024
""")
    p.L("L_g1_segdone")
    VX, VW, VAX, VAW = 4, 8, 10, 14
    T = 16
    p.I(f"""
s_lshl_b32 s15, s8, 7
s_lshl_b32 s42, s13, 5
s_add_u32 s15, s15, s42
s_lshl_b32 s15, s15, 10
v_lshrrev_b32 v{T}, 3, v2
v_lshlrev_b32 v{T}, 10, v{T}
v_add_u32 v{T}, s15, v{T}
v_and_b32 v{T+1}, 7, v2
v_lshrrev_b32 v{T+2}, 4, v2
v_xor_b32 v{T+3}, v{T+1}, v{T+2}
v_lshl_add_u32 v{VX}, v{T+3}, 4, v{T}
v_xor_b32 v{T+3}, 4, v{T+3}
v_lshl_add_u32 v{VX+1}, v{T+3}, 4, v{T}
v_add_u32 v{VX+1}, 7168, v{VX+1}
v_add_u32 v{VX+2}, 14336, v{VX}
v_add_u32 v{VX+3}, 14336, v{VX+1}
""")
    p.I(f"""
s_lshl_b32 s42, s13, 3
v_add_u32 v{T}, s42, v{T+2}
s_movk_i32 s42, 3072
v_mul_lo_u32 v{T}, v{T}, s42
v_add_u32 v{T}, s11, v{T}
v_bfe_u32 v{T+1}, v2, 2, 2
v_xor_b32 v{T+1}, v{T+1}, v{T+2}
v_lshrrev_b32 v{T+3}, 1, v{T+1}
v_mul_lo_u32 v{T+3}, v{T+3}, s12
v_add_u32 v{T}, v{T}, v{T+3}
v_and_b32 v{T+1}, 1, v{T+1}
v_lshl_add_u32 v{T}, v{T+1}, 6, v{T}
v_and_b32 v{T+1}, 3, v2
v_lshl_add_u32 v{VW}, v{T+1}, 4, v{T}
v_add_u32 v{VW+1}, {4*3072-1024}, v{VW}
""")
    p.I(f"""
s_lshr_b32 s42, s13, 1
s_and_b32 s43, s13, 1
s_lshl_b32 s42, s42, 6
v_and_b32 v{T}, 31, v2
v_add_u32 v{T+1}, s42, v{T}
v_lshlrev_b32 v{T+1}, 7, v{T+1}
v_bfe_u32 v{T+2}, v2, 1, 3
v_lshrrev_b32 v{T+3}, 5, v2
v_xor_b32 v{T+2}, v{T+2}, v{T+3}
""")
    for kk in range(4):
        p.I(f"""
v_xor_b32 v{T+3}, {2*kk}, v{T+2}
v_lshl_add_u32 v{VAX+kk}, v{T+3}, 4, v{T+1}""")
    p.I(f"""
v_bfe_u32 v{T}, v2, 2, 2
v_lshrrev_b32 v{T+1}, 5, v2
v_lshl_add_u32 v{T+1}, v{T+1}, 3, v{T}
v_lshlrev_b32 v{T+1}, 8, v{T+1}
v_xor_b32 v{T+2}, s43, v{T}
v_lshl_add_u32 v{T+1}, v{T+2}, 6, v{T+1}
v_bfe_u32 v{T+2}, v2, 4, 1
v_lshl_add_u32 v{T+1}, v{T+2}, 5, v{T+1}
v_and_b32 v{T+2}, 3, v2
v_lshl_add_u32 v{T+1}, v{T+2}, 3, v{T+1}
v_add_u32 v{VAW}, 49152, v{T+1}
v_xor_b32 v{VAW+1}, 128, v{VAW}
""")
    p.I("s_waitcnt lgkmcnt(0)")
    srd(p, 44, S_X, 0x200000)
    srd(p, 48, S_W, 1572864)
    srd(p, 52, S_WS, WS_SIZE)
    srd(p, 56, S_DBG, 256)
    p.I("""
s_lshl_b32 s60, s13, 12
s_lshl_b32 s61, s13, 11
s_add_u32 s61, s61, 49152
s_lshl_b32 s62, s10, 1
""")
    p.I("s_cmp_lt_u32 s9, 2\ns_cbranch_scc1 L_g1q")
    for typ in ("kv", "q"):
        if typ == "q": p.L("L_g1q")
        gemm1_main(p, typ, VX, VW, VAX, VAW)

def gemm1_main(p, typ, VX, VW, VAX, VAW):
    vm = VM()
    FB = 32
    ACC = 64
    def dma_x(c):
        p.I(f"""
s_add_u32 s63, s10, {c}
s_and_b32 s63, s63, 7
s_lshl_b32 s63, s63, 7
s_add_u32 m0, s60, {(c%3)*16384}""")
        for ii in range(4):
            p.I(f"buffer_load_dwordx4 v{VX+ii}, s[44:47], s63 offen offset:{ii*1024} lds")
        vm.issue(("x", c), 4)
    def dma_w(s):
        p.I(f"""
s_add_u32 s63, s62, {s}
s_and_b32 s63, s63, 15
s_mul_i32 s63, s63, 98304
s_add_u32 m0, s61, {(s%4)*8192}""")
        for ii in range(2):
            p.I(f"buffer_load_dwordx4 v{VW+ii}, s[48:51], s63 offen offset:{ii*1024} lds")
        vm.issue(("w", s), 2)
    def read_frags(j):
        b = FB + (j & 1) * 16
        c, kk, s, k2 = j >> 2, j & 3, j >> 1, j & 1
        for rt in range(2):
            p.I(f"ds_read_b128 v[{b+rt*4}:{b+rt*4+3}], v{VAX+kk} offset:{(c%3)*16384 + rt*4096}")
        for bi in range(2):
            for h in range(2):
                r = b + 8 + bi*4 + h*2
                p.I(f"ds_read_b64_tr_b16 v[{r}:{r+1}], v{VAW+bi} offset:{(s%4)*8192 + (16*k2+4*h)*256}")
    def mfmas(j):
        b = FB + (j & 1) * 16
        for rt in range(2):
            for bi in range(2):
                a = ACC + (rt*2+bi)*16
                xa = f"v[{b+rt*4}:{b+rt*4+3}]"; wb = f"v[{b+8+bi*4}:{b+8+bi*4+3}]"
                if typ == "kv":
                    p.I(f"v_mfma_f32_32x32x16_bf16 v[{a}:{a+15}], {xa}, {wb}, v[{a}:{a+15}]")
                else:
                    p.I(f"v_mfma_f32_32x32x16_bf16 v[{a}:{a+15}], {wb}, {xa}, v[{a}:{a+15}]")
    dma_x(0); dma_w(0); dma_w(1); dma_x(1); dma_w(2); dma_w(3); dma_x(2)
    p.I(f"s_mov_b32 s64, {f32(EPS)}")
    for rt in range(2):
        for bi in range(2):
            a = ACC + (rt*2+bi)*16
            val = "s64" if (typ == "q" or bi == 0) else "0"
            for i in range(16):
                p.I(f"v_mov_b32 v{a+i}, {val}")
    p.I(f"s_waitcnt vmcnt({vm.wait_for([('x',0),('w',0)])})\ns_barrier")
    read_frags(0)
    for j in range(32):
        waited = False
        if j + 1 < 32:
            if (j + 1) % 2 == 0:
                s1 = (j + 1) // 2
                n = vm.wait_for([("w", s1), ("x", (j + 1) >> 2)])
                p.I(f"s_waitcnt vmcnt({n}) lgkmcnt(0)\ns_barrier")
                waited = True
                if s1 + 3 < 16: dma_w(s1 + 3)
                if (j + 1) % 4 == 0:
                    c1 = (j + 1) // 4
                    if c1 + 2 < 8: dma_x(c1 + 2)
            read_frags(j + 1)
            if not waited: p.I("s_waitcnt lgkmcnt(6)")
        else:
            p.I("s_waitcnt lgkmcnt(0)")
        mfmas(j)
    p.I(f"""
s_mov_b32 s66, {f32(L2E)}
s_mov_b32 s67, {f32(L2E)}
v_mov_b32 v16, {f32(-EPS*L2E)}
v_mov_b32 v17, {f32(-EPS*L2E)}
""")
    TMP = 128
    PK = 144
    if typ == "q":
        p.I(f"""
s_lshr_b32 s42, s13, 1
s_and_b32 s43, s13, 1
s_lshl_b32 s63, s8, 2
s_lshl_b32 s42, s42, 1
s_add_u32 s63, s63, s42
s_lshl_b32 s63, s63, 5
s_lshl_b32 s42, s14, 3
s_add_u32 s63, s63, s42
s_lshl_b32 s43, s43, 1
s_add_u32 s63, s63, s43
s_lshl_b32 s63, s63, 10
v_lshlrev_b32 v18, 4, v2
""")
        k = 0
        for rt in range(2):
            for bi in range(2):
                a = ACC + (rt*2+bi)*16
                o = PK + (k % 2) * 8
                phi_tile(p, a, 16, TMP, 66, 16, 64, o)
                p.I(f"s_add_u32 s65, s63, {rt*32768 + bi*4096}")
                p.I(f"buffer_store_dwordx4 v[{o}:{o+3}], v18, s[52:55], s65 offen")
                p.I(f"buffer_store_dwordx4 v[{o+4}:{o+7}], v18, s[52:55], s65 offen offset:1024")
                k += 1
        p.I("s_endpgm")
    else:
        KVA = 176
        ZA = 192
        ONES = 208
        p.I(f"s_mov_b32 s42, 0x3f803f80")
        for i in range(4): p.I(f"v_mov_b32 v{ONES+i}, s42")
        for rt in range(2):
            ak = ACC + (rt*2+0)*16; av = ACC + (rt*2+1)*16
            ok = PK + rt*16; ov = ok + 8
            phi_tile(p, ak, 16, TMP, 66, 16, 64, ok)
            for i in range(0, 16, 2):
                p.I(f"v_cvt_pk_bf16_f32 v{ov+i//2}, v{av+i}, v{av+i+1}")
        first = True
        for rt in range(2):
            ok = PK + rt*16; ov = ok + 8
            for hf in range(2):
                c1 = "0" if first else f"v[{KVA}:{KVA+15}]"
                c2 = "0" if first else f"v[{ZA}:{ZA+15}]"
                p.I(f"v_mfma_f32_32x32x16_bf16 v[{KVA}:{KVA+15}], v[{ok+4*hf}:{ok+4*hf+3}], v[{ov+4*hf}:{ov+4*hf+3}], {c1}")
                p.I(f"v_mfma_f32_32x32x16_bf16 v[{ZA}:{ZA+15}], v[{ONES}:{ONES+3}], v[{ok+4*hf}:{ok+4*hf+3}], {c2}")
                first = False
        p.I("s_mov_b32 s42, 0xffff0000\ns_mov_b32 s43, 0xffff0000")
        SEL = 128
        for m in range(8):
            p.I(f"v_cndmask_b32 v{SEL+m}, v{KVA+m}, v{KVA+8+m}, s[42:43]")
        p.I(f"""
s_barrier
s_mul_i32 s63, s13, 2304
v_bfe_u32 v18, v2, 4, 1
v_lshlrev_b32 v18, 10, v18
v_lshrrev_b32 v19, 5, v2
v_lshl_add_u32 v18, v19, 9, v18
v_and_b32 v19, 15, v2
v_lshl_add_u32 v18, v19, 5, v18
v_add_u32 v18, s63, v18
ds_write_b128 v18, v[{SEL}:{SEL+3}]
ds_write_b128 v18, v[{SEL+4}:{SEL+7}] offset:16
v_lshlrev_b32 v19, 2, v2
v_add_u32 v19, s63, v19
v_and_b32 v20, 31, v2
v_lshlrev_b32 v20, 2, v20
v_add_u32 v20, s63, v20
ds_write_b32 v20, v{ZA} offset:2048
""")
        p.I("v_mov_b32 v21, 0\ns_mov_b32 s43, 0")
        p.L("L_g1_poll")
        p.I("""
buffer_load_dword v22, v21, s[56:59], 0 offen sc1
s_add_u32 s43, s43, 1
s_waitcnt vmcnt(0)
v_readfirstlane_b32 s42, v22
s_nop 3
s_lshr_b32 s65, s43, 16
s_or_b32 s42, s42, s65
s_cmp_eq_u32 s42, 0
s_cbranch_scc1 L_g1_poll
s_waitcnt lgkmcnt(0)
s_barrier
""")
        p.I(f"""
s_lshr_b32 s42, s13, 1
s_and_b32 s43, s13, 1
s_mul_i32 s63, s43, 2304
s_lshl_b32 s65, s42, 10
s_add_u32 s65, s65, s63
v_lshlrev_b32 v19, 2, v2
v_add_u32 v20, s65, v19
""")
        for i in range(4):
            p.I(f"ds_read_b32 v{24+i}, v20 offset:{256*i}")
            p.I(f"ds_read_b32 v{28+i}, v20 offset:{4608+256*i}")
        p.I(f"""
s_lshl_b32 s65, s42, 6
s_add_u32 s65, s65, s63
v_and_b32 v21, 15, v2
v_lshlrev_b32 v22, 2, v21
v_add_u32 v22, s65, v22
ds_read_b32 v32, v22 offset:2048
ds_read_b32 v33, v22 offset:{2048+4608}
""")
        p.I(f"""
s_lshl_b32 s63, s14, 2
s_lshl_b32 s43, s43, 1
s_add_u32 s63, s63, s43
s_add_u32 s63, s63, s42
s_mul_i32 s63, s63, {KVREC}
s_add_u32 s63, s63, {hex(WS_KV)}
v_bfe_u32 v22, v21, 2, 1
v_lshlrev_b32 v22, 5, v22
v_lshrrev_b32 v23, 3, v21
v_lshl_add_u32 v22, v23, 4, v22
v_and_b32 v23, 3, v21
v_lshl_add_u32 v22, v23, 2, v22
s_waitcnt lgkmcnt(0)
""")
        for i in range(4):
            p.I(f"v_add_f32 v{24+i}, v{24+i}, v{28+i}")
        p.I("v_add_f32 v32, v32, v33")
        for i in range(4):
            p.I(f"buffer_atomic_add_f32 v{24+i}, v19, s[52:55], s63 offen offset:{256*i}")
        p.I("""
s_mov_b64 exec, 0xffff
buffer_atomic_add_f32 v32, v22, s[52:55], s63 offen offset:1024
s_endpgm
""")

def aux1(p):
    p.L("L_aux")
    p.I("""
s_sub_u32 s3, s2, 192
v_lshrrev_b32 v1, 6, v0
v_and_b32 v2, 63, v0
s_nop 0
v_readfirstlane_b32 s13, v1
s_waitcnt lgkmcnt(0)
""")
    srd(p, 52, S_WS, WS_SIZE)
    srd(p, 44, S_LAR, 131072)
    srd(p, 48, S_AIM, 131072)
    srd(p, 56, S_CRE, 131072)
    srd(p, 60, S_CIM, 131072)
    srd(p, 64, S_LDT, 1024)
    srd(p, 68, S_DSK, 1024)
    srd(p, 72, S_U, 0x200000)
    srd(p, 76, S_DBG, 256)
    p.I("""
s_lshr_b32 s4, s13, 1
s_lshl_b32 s6, s3, 1
s_add_u32 s4, s4, s6
s_and_b32 s5, s13, 1
s_lshl_b32 s6, s4, 8
s_lshl_b32 s7, s5, 7
s_add_u32 s6, s6, s7
s_lshl_b32 s7, s4, 1
v_lshlrev_b32 v3, 1, v2
v_mov_b32 v4, 0
buffer_load_ushort v8, v3, s[44:47], s6 offen
buffer_load_ushort v9, v3, s[48:51], s6 offen
buffer_load_ushort v10, v3, s[56:59], s6 offen
buffer_load_ushort v11, v3, s[60:63], s6 offen
buffer_load_ushort v12, v4, s[64:67], s7 offen
buffer_load_ushort v13, v4, s[68:71], s7 offen
""")
    p.I("s_cmp_lg_u32 s3, 0\ns_cbranch_scc1 L_aux_nozero")
    p.I(f"""
v_lshlrev_b32 v5, 4, v0
v_mov_b32 v16, 0
v_mov_b32 v17, 0
v_mov_b32 v18, 0
v_mov_b32 v19, 0
""")
    srd_off(p, 80, S_WS, WS_KV, 32 * KVREC)
    for i in range(9):
        p.I(f"s_movk_i32 s8, {i*4096}" if i * 4096 < 32768 else f"s_mov_b32 s8, {i*4096}")
        p.I(f"buffer_store_dwordx4 v[16:19], v5, s[80:83], s8 offen sc0 sc1")
    p.I("""
s_waitcnt vmcnt(0)
s_barrier
v_mov_b32 v5, 1
s_mov_b64 s[8:9], exec
v_cmp_eq_u32 vcc, 0, v0
s_and_b64 exec, exec, vcc
s_cbranch_execz L_aux_zdone
buffer_store_dword v5, v4, s[76:79], 0 offen sc0 sc1
""")
    p.L("L_aux_zdone")
    p.I("s_mov_b64 exec, s[8:9]")
    p.L("L_aux_nozero")
    p.I("s_cmp_ge_u32 s3, 64\ns_cbranch_scc1 L_aux_notr")
    R = 64
    p.I(f"""
s_lshl_b32 s8, s3, 2
s_add_u32 s8, s8, s13
s_lshr_b32 s9, s8, 3
s_and_b32 s8, s8, 7
s_lshl_b32 s10, s9, 16
s_lshl_b32 s11, s8, 7
s_add_u32 s10, s10, s11
v_lshrrev_b32 v5, 3, v2
v_and_b32 v6, 7, v2
v_lshlrev_b32 v7, 13, v5
v_lshl_add_u32 v7, v6, 4, v7
v_add_u32 v14, 4096, v7
""")
    for i in range(8):
        p.I(f"buffer_load_dwordx4 v[{R+4*i}:{R+4*i+3}], v{7 if i < 4 else 14}, s[72:75], s10 offen offset:{(i%4)*1024}")
    p.I(f"""
s_lshl_b32 s10, s8, 18
s_lshl_b32 s11, s9, 7
s_add_u32 s10, s10, s11
s_add_u32 s10, s10, {hex(WS_UT)}
v_lshlrev_b32 v7, 15, v6
v_lshl_add_u32 v7, v5, 4, v7
s_mov_b32 s8, 0x05040100
s_mov_b32 s9, 0x07060302
s_waitcnt vmcnt(0)
""")
    O = 96
    for j in range(8):
        for tp in range(4):
            p.I(f"v_perm_b32 v{O+4*j+tp}, v{R+4*(2*tp+1)+j//2}, v{R+4*(2*tp)+j//2}, s{8 + (j & 1)}")
        p.I(f"s_add_u32 s11, s10, {j*4096}")
        p.I(f"buffer_store_dwordx4 v[{O+4*j}:{O+4*j+3}], v7, s[52:55], s11 offen")
    p.L("L_aux_notr")
    p.I(f"""
s_waitcnt vmcnt(0)
s_mov_b32 s8, {f32(L2E)}
v_lshlrev_b32 v8, 16, v8
v_lshlrev_b32 v9, 16, v9
v_lshlrev_b32 v10, 16, v10
v_lshlrev_b32 v11, 16, v11
v_lshlrev_b32 v12, 16, v12
v_lshlrev_b32 v13, 16, v13
v_mul_f32 v8, s8, v8
v_mul_f32 v12, s8, v12
v_exp_f32 v8, v8
v_exp_f32 v12, v12
v_cvt_pk_bf16_f32 v8, v8, v12
v_and_b32 v12, 0xffff0000, v8
v_lshlrev_b32 v8, 16, v8
v_mul_f32 v8, v8, v12
v_mul_f32 v8, {f32(-L2E)}, v8
v_mul_f32 v9, v9, v12
v_mul_f32 v9, 0.15915494309189535, v9
v_fract_f32 v9, v9
v_mul_f32 v10, v10, v12
v_mul_f32 v11, v11, v12
v_add_f32 v10, v10, v10
v_add_f32 v11, v11, v11
s_lshl_b32 s9, s13, 10
v_lshlrev_b32 v5, 2, v2
v_add_u32 v5, s9, v5
ds_write_b32 v5, v8
ds_write_b32 v5, v9 offset:256
ds_write_b32 v5, v10 offset:512
ds_write_b32 v5, v11 offset:768
v_lshrrev_b32 v6, 4, v2
v_lshlrev_b32 v6, 6, v6
v_add_u32 v6, s9, v6
v_and_b32 v7, 15, v2
v_cvt_f32_u32 v14, v7
v_cmp_eq_u32 vcc, 0, v2
s_cmp_eq_u32 s5, 0
s_cselect_b64 s[10:11], vcc, 0
v_cndmask_b32 v13, 0, v13, s[10:11]
s_waitcnt lgkmcnt(0)
""")
    PA, PB, PCR, PCI = 16, 32, 48, 64
    for arr, base in enumerate((PA, PB, PCR, PCI)):
        for q in range(4):
            p.I(f"ds_read_b128 v[{base+4*q}:{base+4*q+3}], v6 offset:{arr*256 + q*16}")
    D = 80
    FA = 100
    TM = 172
    for i in range(20): p.I(f"v_mov_b32 v{D+i}, 0")
    p.I("s_waitcnt lgkmcnt(0)")
    def pr(r): return f"v[{r}:{r+1}]"
    def chain(ks, pi, fb):
        n = 4*ks + 2*pi
        t = TM + pi*16
        Fr, Fi, X, Y, Hr, Hn, T1, T2 = t, t+2, t+4, t+6, t+8, t+10, t+12, t+14
        A = lambda r: fb + r*4 + 2*pi
        B = lambda r: fb + 20 + r*4 + 2*pi
        L = []
        L.append(f"v_pk_mul_f32 {pr(X)}, {pr(PA+n)}, v[14:15] op_sel_hi:[1,0]")
        L.append(f"v_pk_mul_f32 {pr(Y)}, {pr(PB+n)}, v[14:15] op_sel_hi:[1,0]")
        L.append(f"v_exp_f32 v{X}, v{X}")
        L.append(f"v_exp_f32 v{X+1}, v{X+1}")
        L.append(f"v_cos_f32 v{Fr}, v{Y}")
        L.append(f"v_cos_f32 v{Fr+1}, v{Y+1}")
        L.append(f"v_sin_f32 v{Fi}, v{Y}")
        L.append(f"v_sin_f32 v{Fi+1}, v{Y+1}")
        L.append(f"v_pk_mul_f32 {pr(Fr)}, {pr(Fr)}, {pr(X)}")
        L.append(f"v_pk_mul_f32 {pr(Fi)}, {pr(Fi)}, {pr(X)}")
        def cvtF(r):
            L.append(f"v_cvt_pk_bf16_f32 v{A(r)}, v{Fr}, v{Fr+1}")
            L.append(f"v_cvt_pk_bf16_f32 v{A(r)+1}, v{Fi}, v{Fi+1}")
        def cvtH(r):
            L.append(f"v_cvt_pk_bf16_f32 v{B(r)}, v{Hr}, v{Hr+1}")
            L.append(f"v_cvt_pk_bf16_f32 v{B(r)+1}, v{Hn}, v{Hn+1}")
        def sq():
            L.append(f"v_pk_mul_f32 {pr(T1)}, {pr(Fi)}, {pr(Fi)}")
            L.append(f"v_pk_add_f32 {pr(T2)}, {pr(Fr)}, {pr(Fr)}")
            L.append(f"v_pk_fma_f32 {pr(Fr)}, {pr(Fr)}, {pr(Fr)}, {pr(T1)} neg_lo:[0,0,1] neg_hi:[0,0,1]")
            L.append(f"v_pk_mul_f32 {pr(Fi)}, {pr(T2)}, {pr(Fi)}")
        cvtF(0); sq(); cvtF(1); sq(); cvtF(2); sq(); cvtF(3); sq(); cvtF(4)
        L.append(f"v_pk_mul_f32 {pr(T1)}, {pr(PCI+n)}, {pr(Fi)}")
        L.append(f"v_pk_mul_f32 {pr(T2)}, {pr(PCI+n)}, {pr(Fr)}")
        L.append(f"v_pk_fma_f32 {pr(Hr)}, {pr(PCR+n)}, {pr(Fr)}, {pr(T1)} neg_lo:[0,0,1] neg_hi:[0,0,1]")
        L.append(f"v_pk_fma_f32 {pr(Hn)}, {pr(PCR+n)}, {pr(Fi)}, {pr(T2)} neg_lo:[1,0,1] neg_hi:[1,0,1]")
        cvtH(0)
        def hmul():
            L.append(f"v_pk_mul_f32 {pr(T1)}, {pr(Hn)}, {pr(Fi)}")
            L.append(f"v_pk_mul_f32 {pr(T2)}, {pr(Hr)}, {pr(Fi)}")
            L.append(f"v_pk_fma_f32 {pr(Hr)}, {pr(Hr)}, {pr(Fr)}, {pr(T1)}")
            L.append(f"v_pk_fma_f32 {pr(Hn)}, {pr(Hn)}, {pr(Fr)}, {pr(T2)} neg_lo:[0,0,1] neg_hi:[0,0,1]")
        hmul(); cvtH(1); sq(); hmul(); cvtH(2); sq(); hmul(); cvtH(3)
        return L
    for ks in range(4):
        fb = FA + (ks & 1) * 36
        c0 = chain(ks, 0, fb); c1 = chain(ks, 1, fb)
        for a, b in zip(c0, c1):
            p.I(a); p.I(b)
        for r in range(4):
            p.I(f"v_mfma_f32_16x16x32_bf16 v[{D+4*r}:{D+4*r+3}], v[{fb+4*r}:{fb+4*r+3}], v[{fb+20+4*r}:{fb+20+4*r+3}], v[{D+4*r}:{D+4*r+3}]")
        p.I(f"v_mfma_f32_16x16x32_bf16 v[{D+16}:{D+19}], v[{fb+16}:{fb+19}], v[{fb+32}:{fb+35}], v[{D+16}:{D+19}]")
    TTB = 4096; TTS = 2816
    p.I(f"""
s_mul_i32 s9, s13, {TTS}
s_add_u32 s9, s9, {TTB+16}
v_lshlrev_b32 v5, 6, v7
v_lshrrev_b32 v6, 4, v2
v_lshl_add_u32 v5, v6, 4, v5
v_add_u32 v5, s9, v5
v_mov_b32 v6, s9
v_mov_b32 v8, 0
v_add_f32 v{D}, v{D}, v13
ds_write_b128 v5, v[{D}:{D+3}]
s_mov_b32 exec_lo, 0xff00ff00
s_mov_b32 exec_hi, 0xff00ff00
ds_write_b128 v5, v[{D+4}:{D+7}] offset:512
ds_write_b128 v5, v[{D+8}:{D+11}] offset:1024
ds_write_b128 v5, v[{D+12}:{D+15}] offset:1536
s_mov_b32 exec_lo, 0
s_mov_b32 exec_hi, 0x8000
ds_write_b32 v6, v{D+16} offset:2560
v_add_u32 v6, -4, v6
ds_write_b32 v6, v8
s_mov_b64 exec, -1
s_waitcnt lgkmcnt(0)
s_barrier
""")
    p.I(f"""
s_and_b32 s9, s13, 2
s_mul_i32 s9, s9, {TTS}
s_add_u32 s9, s9, {TTB+16}
s_lshl_b32 s10, s4, 13
s_add_u32 s10, s10, {hex(WS_KT)}
s_add_u32 s11, s10, 4096
v_lshlrev_b32 v3, 4, v2
s_cmp_eq_u32 s5, 0
s_cbranch_scc0 L_aux_lo
""")
    p.I(f"""
v_sub_u32 v5, 575, v2
v_lshlrev_b32 v5, 2, v5
v_add_u32 v5, s9, v5
v_add_u32 v6, {TTS}, v5
ds_read2_b32 v[16:17], v5 offset0:64 offset1:65
ds_read2_b32 v[18:19], v6 offset0:64 offset1:65
ds_read2_b32 v[20:21], v5 offset0:0 offset1:1
ds_read2_b32 v[22:23], v6 offset0:0 offset1:1
s_mov_b32 s6, 0xaaaaaaaa
s_mov_b32 s7, 0xaaaaaaaa
s_waitcnt lgkmcnt(0)
v_pk_add_f32 v[16:17], v[16:17], v[18:19]
v_pk_add_f32 v[20:21], v[20:21], v[22:23]
""")
    for c in range(2):
        lo, hi = 16 + 4*c, 17 + 4*c
        X = 18 + 4*c
        o1, o0 = 24 + 8*c, 28 + 8*c
        p.I(f"""
v_cndmask_b32 v{X}, v{hi}, v{lo}, s[6:7]
v_cvt_pk_bf16_f32 v{o1}, v{hi}, v{hi}
v_cvt_pk_bf16_f32 v{o1+2}, v{lo}, v{lo}
v_cvt_pk_bf16_f32 v{o1+1}, v{hi}, v{X}
v_cvt_pk_bf16_f32 v{o0+1}, v{X}, v{lo}
v_mov_b32 v{o1+3}, v{o1+2}
v_mov_b32 v{o0}, v{o1}
v_mov_b32 v{o0+2}, v{o1+2}
v_mov_b32 v{o0+3}, v{o1+2}
buffer_store_dwordx4 v[{o1}:{o1+3}], v3, s[52:55], s11 offen offset:{1024*c}
buffer_store_dwordx4 v[{o0}:{o0+3}], v3, s[52:55], s10 offen offset:{1024*c}
""")
    p.I("s_endpgm")
    p.L("L_aux_lo")
    p.I(f"""
v_lshlrev_b32 v5, 3, v2
v_sub_u32 v5, 2040, v5
v_add_u32 v5, s9, v5
v_add_u32 v6, {TTS}, v5
ds_read_b64 v[16:17], v5
ds_read_b64 v[18:19], v6
ds_read_b32 v20, v5 offset:8
ds_read_b32 v21, v6 offset:8
s_mov_b32 exec_hi, 0
v_lshlrev_b32 v5, 4, v2
v_sub_u32 v5, 1516, v5
v_add_u32 v5, s9, v5
v_add_u32 v6, {TTS}, v5
ds_read_b128 v[40:43], v5 offset:4
ds_read_b128 v[44:47], v6 offset:4
ds_read_b32 v48, v5 offset:20
ds_read_b32 v49, v6 offset:20
ds_read_b32 v50, v5
ds_read_b32 v51, v6
s_mov_b32 exec_lo, 0
s_mov_b32 exec_hi, -1
v_lshlrev_b32 v5, 5, v2
v_sub_u32 v5, 2012, v5
v_add_u32 v5, s9, v5
v_add_u32 v6, {TTS}, v5
ds_read_b128 v[56:59], v5 offset:4
ds_read_b128 v[60:63], v5 offset:20
ds_read_b128 v[64:67], v6 offset:4
ds_read_b128 v[68:71], v6 offset:20
ds_read_b32 v54, v5
ds_read_b32 v55, v6
s_waitcnt lgkmcnt(0)
v_pk_add_f32 v[56:57], v[56:57], v[64:65]
v_pk_add_f32 v[58:59], v[58:59], v[66:67]
v_pk_add_f32 v[60:61], v[60:61], v[68:69]
v_pk_add_f32 v[62:63], v[62:63], v[70:71]
v_add_f32 v55, v54, v55
s_mov_b32 exec_lo, -1
s_mov_b32 exec_hi, 0
v_pk_add_f32 v[40:41], v[40:41], v[44:45]
v_pk_add_f32 v[42:43], v[42:43], v[46:47]
v_add_f32 v63, v48, v49
v_add_f32 v50, v50, v51
s_mov_b32 s6, 0x80000000
s_mov_b32 s7, 0
v_cndmask_b32 v55, v40, v50, s[6:7]
v_mov_b32 v56, v40
v_mov_b32 v57, v40
v_mov_b32 v58, v41
v_mov_b32 v59, v42
v_mov_b32 v60, v42
v_mov_b32 v61, v42
v_mov_b32 v62, v43
s_mov_b64 exec, -1
v_pk_add_f32 v[16:17], v[16:17], v[18:19]
v_add_f32 v20, v20, v21
""")
    p.I("""
v_cvt_pk_bf16_f32 v24, v20, v20
v_cvt_pk_bf16_f32 v25, v17, v17
v_cvt_pk_bf16_f32 v26, v17, v16
v_cvt_pk_bf16_f32 v27, v16, v16
v_cvt_pk_bf16_f32 v28, v20, v17
v_mov_b32 v29, v25
v_mov_b32 v30, v27
v_mov_b32 v31, v27
buffer_store_dwordx4 v[24:27], v3, s[52:55], s11 offen offset:2048
buffer_store_dwordx4 v[28:31], v3, s[52:55], s10 offen offset:2048
""")
    p.I("""
v_cvt_pk_bf16_f32 v32, v63, v62
v_cvt_pk_bf16_f32 v33, v61, v60
v_cvt_pk_bf16_f32 v34, v59, v58
v_cvt_pk_bf16_f32 v35, v57, v56
v_cvt_pk_bf16_f32 v36, v62, v61
v_cvt_pk_bf16_f32 v37, v60, v59
v_cvt_pk_bf16_f32 v38, v58, v57
v_cvt_pk_bf16_f32 v39, v56, v55
buffer_store_dwordx4 v[32:35], v3, s[52:55], s11 offen offset:3072
buffer_store_dwordx4 v[36:39], v3, s[52:55], s10 offen offset:3072
s_endpgm
""")

def conv(p):
    p.L("L_conv")
    WST = 17696; R1O = 4224; U0O = 8448; U1O = 13088
    p.I(f"""
s_and_b32 s3, s2, 7
s_lshr_b32 s4, s2, 3
s_and_b32 s5, s4, 15
s_bfe_u32 s6, s4, 0x10004
s_lshl_b32 s7, s3, 6
s_lshl_b32 s5, s5, 2
s_add_u32 s7, s7, s5
v_lshrrev_b32 v1, 6, v0
v_and_b32 v2, 63, v0
s_nop 0
v_readfirstlane_b32 s13, v1
s_nop 3
s_add_u32 s8, s7, s13
s_mul_i32 s9, s13, {WST}
s_lshl_b32 s10, s8, 13
s_add_u32 s10, s10, {hex(WS_KT)}
s_add_u32 s11, s10, 4096
s_lshl_b32 s12, s8, 12
s_add_u32 s12, s12, {hex(WS_UT)}
s_sub_u32 s14, s12, 4
v_lshlrev_b32 v3, 4, v2
s_waitcnt lgkmcnt(0)
""")
    srd(p, 52, S_WS, WS_SIZE)
    srd(p, 44, S_OUT, 0x400000)
    VA, VB, VY = 4, 5, 6
    p.I(f"""
v_and_b32 v8, 15, v2
v_lshrrev_b32 v9, 4, v2
v_and_b32 v10, 1, v2
v_lshrrev_b32 v11, 1, v8
s_movk_i32 s15, {R1O}
v_mul_lo_u32 v12, v10, s15
v_lshlrev_b32 v13, 3, v11
v_sub_u32 v12, v12, v13
v_lshl_add_u32 v12, v9, 4, v12
s_add_u32 s15, s9, {2*2044 - 64*63}
v_add_u32 v{VA}, s15, v12
s_movk_i32 s15, {U0O - U1O}
v_mul_lo_u32 v12, v10, s15
v_lshl_add_u32 v12, v11, 6, v12
v_lshl_add_u32 v12, v9, 4, v12
s_add_u32 s15, s9, {U1O + 64}
v_add_u32 v{VB}, s15, v12
v_lshlrev_b32 v12, 6, v11
v_lshl_add_u32 v12, v10, 2, v12
v_lshl_add_u32 v12, v9, 4, v12
v_add_u32 v{VY}, s9, v12
v_add_u32 v7, 1024, v{VY}
v_mov_b32 v16, 0
v_mov_b32 v17, 0
v_mov_b32 v18, 0
v_mov_b32 v19, 0
v_add_u32 v12, s9, v3
""")
    p.I("s_cmp_eq_u32 s6, 0\ns_cbranch_scc0 L_conv_b")
    for st, tiles in (("a", [7, 6, 1, 0]), ("b", [5, 4, 3, 2])):
        if st == "b": p.L("L_conv_b")
        tmax = max(tiles)
        k0 = 0 if tmax == 7 else 1
        nu = 4 if tmax == 7 else 3
        p.I(f"s_add_u32 m0, s9, {U0O+512}")
        for i in range(nu): p.I(f"buffer_load_dwordx4 v3, s[52:55], s12 offen offset:{1024*i} lds")
        p.I(f"s_add_u32 m0, s9, {U1O+512}")
        for i in range(nu): p.I(f"buffer_load_dwordx4 v3, s[52:55], s14 offen offset:{1024*i} lds")
        p.I(f"s_add_u32 m0, s9, 0")
        for i in range(k0, 4): p.I(f"buffer_load_dwordx4 v3, s[52:55], s10 offen offset:{1024*i} lds")
        p.I(f"s_add_u32 m0, s9, {R1O}")
        for i in range(k0, 4): p.I(f"buffer_load_dwordx4 v3, s[52:55], s11 offen offset:{1024*i} lds")
        p.I(f"""
s_mov_b32 exec_hi, 0
ds_write_b128 v12, v[16:19] offset:{U0O}
ds_write_b128 v12, v[16:19] offset:{U1O}
s_mov_b32 exec_lo, 15
ds_write_b128 v12, v[16:19] offset:4096
ds_write_b128 v12, v[16:19] offset:{R1O+4096}
s_mov_b64 exec, -1
""")
        ACC = 20
        FR = 40
        for i in range(16): p.I(f"v_mov_b32 v{ACC+i}, 0")
        p.I(f"""
s_waitcnt vmcnt(0)
s_mov_b64 exec, 1
ds_write_b32 v12, v16 offset:{U1O+512}
s_mov_b64 exec, -1
s_waitcnt lgkmcnt(0)
""")
        nfr = tmax + 1
        def reads(phi):
            b = FR + (phi & 1) * 64
            L = []
            for i in range(nfr):
                m = tmax - i
                bp = phi + 8 * i
                L.append(f"ds_read_b64 v[{b+4*i}:{b+4*i+1}], v{VA} offset:{64*(63-bp)}")
                L.append(f"ds_read_b64 v[{b+4*i+2}:{b+4*i+3}], v{VA} offset:{64*(63-bp)+8}")
                L.append(f"ds_read_b128 v[{b+32+4*m}:{b+32+4*m+3}], v{VB} offset:{512*m + 64*(7-phi)}")
            return L
        def mf(phi):
            b = FR + (phi & 1) * 64
            L = []
            for ti, T in enumerate(tiles):
                for i in range(T + 1):
                    a = ACC + 4*ti
                    L.append(f"v_mfma_f32_16x16x32_bf16 v[{a}:{a+3}], v[{b+4*i}:{b+4*i+3}], v[{b+32+4*(T-i)}:{b+32+4*(T-i)+3}], v[{a}:{a+3}]")
            return L
        for r in reads(0): p.I(r)
        for phi in range(8):
            p.I("s_waitcnt lgkmcnt(0)")
            rl = reads(phi + 1) if phi < 7 else []
            ml = mf(phi)
            ri = 0
            for m in ml:
                p.I(m)
                for _ in range(2):
                    if ri < len(rl):
                        p.I(rl[ri]); ri += 1
            assert ri == len(rl)
        for ti in range(4):
            a = ACC + 4*ti
            p.I(f"v_cvt_pk_bf16_f32 v{40+2*ti}, v{a}, v{a+1}")
            p.I(f"v_cvt_pk_bf16_f32 v{41+2*ti}, v{a+2}, v{a+3}")
        for ti in range(4):
            va = VY if ti < 2 else 7
            o = (ti & 1) * 128
            p.I(f"ds_write2_b32 v{va}, v{40+2*ti}, v{41+2*ti} offset0:{o} offset1:{o+2}")
        p.I(f"""
s_movk_i32 s15, {tiles[0]}
s_cmp_eq_u32 s13, 1
s_cselect_b32 s15, {tiles[1]}, s15
s_cmp_eq_u32 s13, 2
s_cselect_b32 s15, {tiles[2]}, s15
s_cmp_eq_u32 s13, 3
s_cselect_b32 s15, {tiles[3]}, s15
s_lshl_b32 s15, s15, 19
s_lshl_b32 s7, s7, 1
s_add_u32 s15, s15, s7
s_add_u32 s15, s15, 1024
v_lshlrev_b32 v8, 3, v0
v_lshlrev_b32 v9, 13, v2
v_add_u32 v10, 4096, v9
s_mov_b32 s8, 0x05040100
s_mov_b32 s9, 0x07060302
s_waitcnt lgkmcnt(0)
s_barrier
""")
        for c in range(4):
            p.I(f"ds_read_b64 v[{48+2*c}:{49+2*c}], v8 offset:{c*WST}")
        p.I("s_waitcnt lgkmcnt(0)")
        for t in range(4):
            d = t >> 1; sel = 8 + (t & 1)
            p.I(f"v_perm_b32 v{56+2*t}, v{50+d}, v{48+d}, s{sel}")
            p.I(f"v_perm_b32 v{57+2*t}, v{54+d}, v{52+d}, s{sel}")
            p.I(f"buffer_store_dwordx2 v[{56+2*t}:{57+2*t}], v{9 if t < 2 else 10}, s[44:47], s15 offen offset:{(t&1)*2048}")
        p.I("s_endpgm")

def gemm2(p):
    p.L("L_g2")
    KVL = 49152
    p.I(f"""
s_sub_u32 s2, s2, 256
s_and_b32 s3, s2, 7
s_lshr_b32 s4, s2, 3
s_and_b32 s5, s4, 3
s_lshl_b32 s3, s3, 2
s_add_u32 s3, s3, s5
s_lshr_b32 s4, s4, 2
v_lshrrev_b32 v1, 6, v0
v_and_b32 v2, 63, v0
s_nop 0
v_readfirstlane_b32 s13, v1
s_nop 3
s_and_b32 s5, s13, 1
s_lshr_b32 s6, s13, 1
v_lshlrev_b32 v3, 4, v0
v_lshlrev_b32 v4, 4, v2
s_waitcnt lgkmcnt(0)
""")
    srd(p, 52, S_WS, WS_SIZE)
    srd_off(p, 56, S_WS, WS_KV, 32 * KVREC)
    srd(p, 44, S_OUT, 0x400000)
    srd(p, 48, S_WO, 0x80000)
    vm = VM()
    KVT = 128
    for i in range(9):
        p.I(f"s_mov_b32 s7, {i*4096}")
        p.I(f"buffer_load_dwordx4 v[{KVT+4*i}:{KVT+4*i+3}], v3, s[56:59], s7 offen")
    vm.issue("kv", 9)
    PQ = 64
    p.I(f"""
s_lshl_b32 s7, s3, 1
s_add_u32 s7, s7, s5
s_lshl_b32 s7, s7, 5
s_lshl_b32 s8, s6, 4
s_add_u32 s7, s7, s8
s_lshl_b32 s7, s7, 10
""")
    for h in range(16):
        if h % 4 == 0 and h > 0: p.I("s_add_u32 s7, s7, 4096")
        p.I(f"buffer_load_dwordx4 v[{PQ+4*h}:{PQ+4*h+3}], v4, s[52:55], s7 offen offset:{(h%4)*1024}")
        vm.issue(("pq", h // 4))
    p.I(f"""
s_lshl_b32 s7, s6, 8
s_lshl_b32 s8, s5, 5
s_add_u32 s7, s7, s8
s_lshl_b32 s7, s7, 10
s_lshl_b32 s8, s4, 7
s_add_u32 s7, s7, s8
v_lshrrev_b32 v8, 3, v2
v_lshlrev_b32 v8, 10, v8
v_add_u32 v8, s7, v8
v_and_b32 v9, 7, v2
v_bfe_u32 v10, v2, 4, 1
v_lshlrev_b32 v10, 2, v10
v_xor_b32 v9, v9, v10
v_lshl_add_u32 v5, v9, 4, v8
s_lshl_b32 s8, s6, 13
s_lshl_b32 s9, s5, 12
s_add_u32 s9, s9, s8
""")
    def dma(st):
        base = st * 16384
        p.I(f"s_add_u32 m0, s9, {base}")
        for ii in range(4):
            p.I(f"s_mov_b32 s7, {st*65536 + ii*7168}")
            p.I(f"buffer_load_dwordx4 v5, s[48:51], s7 offen offset:{ii*1024} lds")
        vm.issue(("wo", st), 4)
    dma(0); dma(1); dma(2)
    p.I(f"""
v_bfe_u32 v8, v2, 2, 2
v_lshrrev_b32 v9, 5, v2
v_lshl_add_u32 v9, v9, 2, v8
v_lshlrev_b32 v9, 7, v9
v_lshrrev_b32 v8, 1, v8
v_lshl_add_u32 v9, v8, 6, v9
v_bfe_u32 v8, v2, 4, 1
v_lshl_add_u32 v9, v8, 5, v9
v_and_b32 v8, 3, v2
v_lshl_add_u32 v9, v8, 3, v9
v_add_u32 v6, s8, v9
v_xor_b32 v7, 64, v6
v_lshrrev_b32 v9, 5, v2
v_and_b32 v8, 15, v2
v_lshl_add_u32 v8, v9, 4, v8
v_lshlrev_b32 v8, 4, v8
v_lshlrev_b32 v9, 4, v9
v_add_u32 v9, 512, v9
s_mov_b32 s10, 0xffff0000
s_mov_b32 s11, 0xffff0000
v_cndmask_b32 v11, v8, v9, s[10:11]
s_mul_i32 s7, s6, {16*544}
s_add_u32 s7, s7, {KVL}
v_add_u32 v11, s7, v11
v_lshlrev_b32 v12, 3, v0
v_add_u32 v12, {KVL}, v12
""")
    ACC = 16
    for i in range(32): p.I(f"v_mov_b32 v{ACC+i}, 0")
    for i in range(9):
        p.I(f"s_waitcnt vmcnt({len(vm.q) - 1 - i})")
        r = KVT + 4*i
        p.I(f"v_cvt_pk_bf16_f32 v{r}, v{r}, v{r+1}\nv_cvt_pk_bf16_f32 v{r+1}, v{r+2}, v{r+3}")
        p.I(f"ds_write_b64 v12, v[{r}:{r+1}] offset:{2048*i}")
    p.I("s_waitcnt lgkmcnt(0)\ns_barrier")
    KZ = 128
    for h in range(16):
        p.I(f"ds_read_b128 v[{KZ+4*h}:{KZ+4*h+3}], v11 offset:{544*h}")
        if h == 7: p.I("s_waitcnt lgkmcnt(4)")
    OD = 192
    WF = 224
    OF = 48
    RC = 56
    p.I(f"s_mov_b32 s12, {f32(EPS)}")
    def omfma(h):
        d = OD + (h & 1) * 16
        p.I(f"v_mfma_f32_32x32x16_bf16 v[{d}:{d+15}], v[{KZ+4*h}:{KZ+4*h+3}], v[{PQ+4*h}:{PQ+4*h+3}], 0")
    def wreads(h):
        st, hl = h // 4, h % 4
        base = st * 16384
        b = WF + (h & 1) * 8
        for cti in range(2):
            for jj in range(2):
                r = b + cti*4 + jj*2
                p.I(f"ds_read_b64_tr_b16 v[{r}:{r+1}], v{6+cti} offset:{base + (16*hl + 8*jj)*128}")
    def oscale(h):
        d = OD + (h & 1) * 16
        o = OF + (h & 1) * 4
        p.I(f"v_add_f32 v{RC}, s12, v{d+8}\nv_rcp_f32 v{RC}, v{RC}")
        for i in range(0, 8, 2):
            p.I(f"v_pk_mul_f32 v[{d+i}:{d+i+1}], v[{d+i}:{d+i+1}], v[{RC}:{RC+1}] op_sel_hi:[1,0]")
        for i in range(0, 8, 2):
            p.I(f"v_cvt_pk_bf16_f32 v{o+i//2}, v{d+i}, v{d+i+1}")
    def main(h):
        b = WF + (h & 1) * 8
        o = OF + (h & 1) * 4
        for cti in range(2):
            a = ACC + cti*16
            p.I(f"v_mfma_f32_32x32x16_bf16 v[{a}:{a+15}], v[{b+cti*4}:{b+cti*4+3}], v[{o}:{o+3}], v[{a}:{a+15}]")
    p.I(f"s_waitcnt vmcnt({vm.wait_for([('wo',0),('pq',3)])}) lgkmcnt(0)\ns_barrier")
    dma(3)
    omfma(0)
    wreads(0)
    for h in range(16):
        if h + 1 < 16: omfma(h + 1)
        oscale(h)
        if h + 1 < 16:
            if (h + 1) % 4 == 0:
                p.I(f"s_waitcnt vmcnt({vm.wait_for([('wo',(h+1)//4)])})\ns_barrier")
            wreads(h + 1)
            p.I("s_waitcnt lgkmcnt(4)")
        else:
            p.I("s_waitcnt lgkmcnt(0)")
        main(h)
    p.I(f"""
s_lshl_b32 s7, s13, 12
v_add_u32 v8, s7, v4
s_xor_b32 s7, s7, 8192
v_add_u32 v9, s7, v4
s_cmp_eq_u32 s6, 0
s_cbranch_scc1 L_g2_k0
""")
    for kh in (1, 0):
        if kh == 0: p.L("L_g2_k0")
        keep = ACC + kh*16; send = ACC + (1-kh)*16
        for i in range(4):
            p.I(f"ds_write_b128 v8, v[{send+4*i}:{send+4*i+3}] offset:{1024*i}")
        p.I(f"""
s_lshl_b32 s7, s3, 6
s_lshl_b32 s10, s5, 5
s_add_u32 s7, s7, s10
s_lshl_b32 s7, s7, 11
s_lshl_b32 s10, s4, 7
s_add_u32 s7, s7, s10
s_add_u32 s7, s7, {kh*64}
v_and_b32 v10, 31, v2
v_lshlrev_b32 v10, 11, v10
v_lshrrev_b32 v11, 5, v2
v_lshl_add_u32 v10, v11, 4, v10
s_waitcnt lgkmcnt(0)
s_barrier
""")
        for i in range(4):
            p.I(f"ds_read_b128 v[{64+4*i}:{64+4*i+3}], v9 offset:{1024*i}")
        p.I("s_waitcnt lgkmcnt(0)")
        for i in range(0, 16, 2):
            p.I(f"v_pk_add_f32 v[{keep+i}:{keep+i+1}], v[{keep+i}:{keep+i+1}], v[{64+i}:{64+i+1}]")
        for i in range(0, 16, 2):
            p.I(f"v_cvt_pk_bf16_f32 v{80+i//2}, v{keep+i}, v{keep+i+1}")
        for jp in range(2):
            b = 80 + 4*jp
            p.I(f"v_permlane32_swap_b32 v{b}, v{b+2}\nv_permlane32_swap_b32 v{b+1}, v{b+3}")
            p.I(f"buffer_store_dwordx4 v[{b}:{b+3}], v10, s[44:47], s7 offen offset:{32*jp}")
        p.I("s_endpgm")

HDR = """; generated by gen.py  (hand-designed CDNA4 kernels: K1 = QKV GEMM + S4D kernel generation, K2 = out GEMM + causal conv)
; @launch kernel=k1_kernel grid=(448,1,1) block=(256,1,1) lds=81920
; @launch kernel=k2_kernel grid=(512,1,1) block=(256,1,1) lds=81920
.amdgcn_target "amdgcn-amd-amdhsa--gfx950"
.text
"""
def kd(name, vg):
    return f"""
.amdhsa_kernel {name}
  .amdhsa_next_free_vgpr {vg}
  .amdhsa_next_free_sgpr 96
  .amdhsa_accum_offset {vg}
  .amdhsa_group_segment_fixed_size 0
  .amdhsa_kernarg_size 104
  .amdhsa_user_sgpr_count 2
  .amdhsa_user_sgpr_kernarg_segment_ptr 1
  .amdhsa_system_sgpr_workgroup_id_x 1
.end_amdhsa_kernel
"""
def build():
    out = HDR
    p = Prog()
    p.raw(".globl k1_kernel\n.p2align 8\n.type k1_kernel,@function\nk1_kernel:")
    p.I("s_cmp_ge_u32 s2, 448\ns_cbranch_scc1 L_k1_exit")
    load_args(p)
    p.I("s_cmp_ge_u32 s2, 192\ns_cbranch_scc1 L_aux")
    gemm1(p)
    aux1(p)
    p.L("L_k1_exit"); p.I("s_endpgm")
    p.raw(".globl k2_kernel\n.p2align 8\n.type k2_kernel,@function\nk2_kernel:")
    p.I("s_cmp_ge_u32 s2, 512\ns_cbranch_scc1 L_k2_exit")
    load_args(p)
    p.I("s_cmp_ge_u32 s2, 256\ns_cbranch_scc1 L_g2")
    conv(p)
    gemm2(p)
    p.L("L_k2_exit"); p.I("s_endpgm")
    out += p.render()
    out += '.section .rodata,"a"\n.p2align 6\n' + kd("k1_kernel", 256) + ".p2align 6\n" + kd("k2_kernel", 256)
    return out
if __name__ == "__main__":
    dst = sys.argv[1] if len(sys.argv) > 1 else "k.s"
    open(dst, "w").write(build())
    print("wrote", dst)
```

```python
import sys, struct
sys.path.insert(0, 'work')
from asmlib import *

WS_PQ = 0x0
WS_KV = 0x200000
WS_KT = 0x300000
WS_UT = 0x800000
WS_SIZE = 0x1000000
KVREC = 1088
L2E = 1.4426950408889634
EPS = 1e-6
def f32(x): return "0x%08x" % struct.unpack("<I", struct.pack("<f", x))[0]

def srd(p, d, lo, size):
    p.I(f"""
s_mov_b32 s{d}, s{lo}
s_mov_b32 s{d+1}, s{lo+1}
s_mov_b32 s{d+2}, {hex(size)}
s_mov_b32 s{d+3}, 0x00020000""")

def srd_off(p, d, lo, off, size):
    p.I(f"""
s_add_u32 s{d}, s{lo}, {hex(off)}
s_addc_u32 s{d+1}, s{lo+1}, 0
s_mov_b32 s{d+2}, {hex(size)}
s_mov_b32 s{d+3}, 0x00020000""")

def load_args(p):
    stamp_start(p)
    p.I("""
s_load_dwordx16 s[16:31], s[0:1], 0
s_load_dwordx8 s[32:39], s[0:1], 64
s_load_dwordx2 s[40:41], s[0:1], 96""")
S_X, S_W, S_WO, S_U, S_LAR, S_AIM, S_CRE, S_CIM, S_LDT, S_DSK, S_OUT, S_DBG, S_WS = 16, 18, 20, 22, 24, 26, 28, 30, 32, 34, 36, 38, 40

STAMP = False
WS_ST = 0xC00000
STAMP_SET = "A"
def stamp(p, idx, sets="A"):
    if not STAMP or STAMP_SET not in sets: return
    p.I(f"s_memtime s[{84+2*idx}:{85+2*idx}]")
def stamp_start(p):
    if not STAMP: return
    p.I("s_memrealtime s[96:97]\ns_memtime s[84:85]\ns_mov_b32 s100, s2")
    for i in range(86, 96): p.I(f"s_mov_b32 s{i}, 0")
def stamp_flush(p, kern):
    if not STAMP: return
    p.I(f"""
s_waitcnt vmcnt(0) lgkmcnt(0)
s_memtime s[94:95]
s_memrealtime s[98:99]
s_mov_b64 exec, -1
s_mov_b32 s44, s40
s_mov_b32 s45, s41
s_mov_b32 s46, {hex(WS_SIZE)}
s_mov_b32 s47, 0x00020000
v_lshrrev_b32 v250, 6, v0
v_lshlrev_b32 v250, 6, v250
s_lshl_b32 s48, s100, 8
s_add_u32 s48, s48, {hex(WS_ST + kern*0x100000)}
s_waitcnt lgkmcnt(0)
""")
    for q in range(4):
        for i in range(4):
            p.I(f"v_mov_b32 v{232+4*q+i}, s{84+4*q+i}")
    p.I("s_mov_b64 exec, 1")
    for q in range(4):
        p.I(f"buffer_store_dwordx4 v[{232+4*q}:{235+4*q}], v250, s[44:47], s48 offen offset:{16*q}")

class VM:
    def __init__(self): self.q = []
    def issue(self, tag, n=1): self.q += [tag] * n
    def wait_for(self, tags):
        last = -1
        for i, t in enumerate(self.q):
            if t in tags: last = i
        n = len(self.q) - 1 - last
        assert n <= 63
        return n

def phi_tile(p, acc, n, tmp, s_l2e, s_nel2e, s_eps, out):
    for i in range(0, n, 2):
        p.I(f"v_pk_fma_f32 v[{tmp+i}:{tmp+i+1}], v[{acc+i}:{acc+i+1}], s[{s_l2e}:{s_l2e+1}], v[{s_nel2e}:{s_nel2e+1}]")
    for i in range(n):
        p.I(f"v_exp_f32 v{tmp+i}, v{tmp+i} clamp")
        p.I(f"v_max_f32 v{acc+i}, s{s_eps}, v{acc+i}")
    for i in range(0, n, 2):
        p.I(f"v_pk_add_f32 v[{acc+i}:{acc+i+1}], v[{acc+i}:{acc+i+1}], v[{tmp+i}:{tmp+i+1}]")
    for i in range(0, n, 2):
        p.I(f"v_cvt_pk_bf16_f32 v{out+i//2}, v{acc+i}, v{acc+i+1}")

def gemm1(p):
    p.L("L_g1")
    p.I("""
s_and_b32 s3, s2, 7
s_lshr_b32 s4, s2, 3
s_lshr_b32 s5, s3, 1
s_and_b32 s6, s3, 1
s_and_b32 s7, s4, 3
s_lshl_b32 s8, s5, 2
s_add_u32 s8, s8, s7
s_lshr_b32 s9, s4, 2
s_lshl_b32 s10, s7, 1
s_add_u32 s10, s10, s9
s_and_b32 s10, s10, 7
v_lshrrev_b32 v1, 6, v0
v_and_b32 v2, 63, v0
s_nop 0
v_readfirstlane_b32 s13, v1
""")
    p.I("""
s_lshl_b32 s14, s6, 1
s_add_u32 s14, s14, s9
s_lshl_b32 s11, s14, 8
s_movk_i32 s12, 128
s_cmp_lt_u32 s9, 2
s_cbranch_scc1 L_g1_segdone
s_lshl_b32 s14, s6, 2
s_add_u32 s14, s14, s9
s_sub_u32 s14, s14, 2
s_lshl_b32 s11, s14, 7
s_add_u32 s11, s11, 1024
s_movk_i32 s12, 1024
""")
    p.L("L_g1_segdone")
    VX, VW, VAX, VAW = 4, 8, 10, 14
    T = 16
    p.I(f"""
s_lshl_b32 s15, s8, 7
s_lshl_b32 s42, s13, 5
s_add_u32 s15, s15, s42
s_lshl_b32 s15, s15, 10
v_lshrrev_b32 v{T}, 3, v2
v_lshlrev_b32 v{T}, 10, v{T}
v_add_u32 v{T}, s15, v{T}
v_and_b32 v{T+1}, 7, v2
v_lshrrev_b32 v{T+2}, 4, v2
v_xor_b32 v{T+3}, v{T+1}, v{T+2}
v_lshl_add_u32 v{VX}, v{T+3}, 4, v{T}
v_xor_b32 v{T+3}, 4, v{T+3}
v_lshl_add_u32 v{VX+1}, v{T+3}, 4, v{T}
v_add_u32 v{VX+1}, 7168, v{VX+1}
v_add_u32 v{VX+2}, 14336, v{VX}
v_add_u32 v{VX+3}, 14336, v{VX+1}
""")
    p.I(f"""
s_lshl_b32 s42, s13, 3
v_add_u32 v{T}, s42, v{T+2}
s_movk_i32 s42, 3072
v_mul_lo_u32 v{T}, v{T}, s42
v_add_u32 v{T}, s11, v{T}
v_bfe_u32 v{T+1}, v2, 2, 2
v_xor_b32 v{T+1}, v{T+1}, v{T+2}
v_lshrrev_b32 v{T+3}, 1, v{T+1}
v_mul_lo_u32 v{T+3}, v{T+3}, s12
v_add_u32 v{T}, v{T}, v{T+3}
v_and_b32 v{T+1}, 1, v{T+1}
v_lshl_add_u32 v{T}, v{T+1}, 6, v{T}
v_and_b32 v{T+1}, 3, v2
v_lshl_add_u32 v{VW}, v{T+1}, 4, v{T}
v_add_u32 v{VW+1}, {4*3072-1024}, v{VW}
""")
    p.I(f"""
s_lshr_b32 s42, s13, 1
s_and_b32 s43, s13, 1
s_lshl_b32 s42, s42, 6
v_and_b32 v{T}, 31, v2
v_add_u32 v{T+1}, s42, v{T}
v_lshlrev_b32 v{T+1}, 7, v{T+1}
v_bfe_u32 v{T+2}, v2, 1, 3
v_lshrrev_b32 v{T+3}, 5, v2
v_xor_b32 v{T+2}, v{T+2}, v{T+3}
""")
    for kk in range(4):
        p.I(f"""
v_xor_b32 v{T+3}, {2*kk}, v{T+2}
v_lshl_add_u32 v{VAX+kk}, v{T+3}, 4, v{T+1}""")
    p.I(f"""
v_bfe_u32 v{T}, v2, 2, 2
v_lshrrev_b32 v{T+1}, 5, v2
v_lshl_add_u32 v{T+1}, v{T+1}, 3, v{T}
v_lshlrev_b32 v{T+1}, 8, v{T+1}
v_xor_b32 v{T+2}, s43, v{T}
v_lshl_add_u32 v{T+1}, v{T+2}, 6, v{T+1}
v_bfe_u32 v{T+2}, v2, 4, 1
v_lshl_add_u32 v{T+1}, v{T+2}, 5, v{T+1}
v_and_b32 v{T+2}, 3, v2
v_lshl_add_u32 v{T+1}, v{T+2}, 3, v{T+1}
v_add_u32 v{VAW}, 49152, v{T+1}
v_xor_b32 v{VAW+1}, 128, v{VAW}
""")
    stamp(p, 1, "B")
    p.I("s_waitcnt lgkmcnt(0)")
    stamp(p, 2, "B")
    srd(p, 44, S_X, 0x200000)
    srd(p, 48, S_W, 1572864)
    srd(p, 52, S_WS, WS_SIZE)
    srd(p, 56, S_DBG, 256)
    p.I("""
s_lshl_b32 s60, s13, 12
s_lshl_b32 s61, s13, 11
s_add_u32 s61, s61, 49152
s_lshl_b32 s62, s10, 1
""")
    p.I("s_cmp_lt_u32 s9, 2\ns_cbranch_scc1 L_g1q")
    for typ in ("kv", "q"):
        if typ == "q": p.L("L_g1q")
        gemm1_main(p, typ, VX, VW, VAX, VAW)

def gemm1_main(p, typ, VX, VW, VAX, VAW):
    vm = VM()
    FB = 32
    ACC = 64
    def dma_x(c):
        p.I(f"""
s_add_u32 s63, s10, {c}
s_and_b32 s63, s63, 7
s_lshl_b32 s63, s63, 7
s_add_u32 m0, s60, {(c%3)*16384}""")
        for ii in range(4):
            p.I(f"buffer_load_dwordx4 v{VX+ii}, s[44:47], s63 offen offset:{ii*1024} lds")
        vm.issue(("x", c), 4)
    def dma_w(s):
        p.I(f"""
s_add_u32 s63, s62, {s}
s_and_b32 s63, s63, 15
s_mul_i32 s63, s63, 98304
s_add_u32 m0, s61, {(s%4)*8192}""")
        for ii in range(2):
            p.I(f"buffer_load_dwordx4 v{VW+ii}, s[48:51], s63 offen offset:{ii*1024} lds")
        vm.issue(("w", s), 2)
    def read_frags(j):
        b = FB + (j & 1) * 16
        c, kk, s, k2 = j >> 2, j & 3, j >> 1, j & 1
        for rt in range(2):
            p.I(f"ds_read_b128 v[{b+rt*4}:{b+rt*4+3}], v{VAX+kk} offset:{(c%3)*16384 + rt*4096}")
        for bi in range(2):
            for h in range(2):
                r = b + 8 + bi*4 + h*2
                p.I(f"ds_read_b64_tr_b16 v[{r}:{r+1}], v{VAW+bi} offset:{(s%4)*8192 + (16*k2+4*h)*256}")
    def mfmas(j):
        b = FB + (j & 1) * 16
        for rt in range(2):
            for bi in range(2):
                a = ACC + (rt*2+bi)*16
                xa = f"v[{b+rt*4}:{b+rt*4+3}]"; wb = f"v[{b+8+bi*4}:{b+8+bi*4+3}]"
                if typ == "kv":
                    p.I(f"v_mfma_f32_32x32x16_bf16 v[{a}:{a+15}], {xa}, {wb}, v[{a}:{a+15}]")
                else:
                    p.I(f"v_mfma_f32_32x32x16_bf16 v[{a}:{a+15}], {wb}, {xa}, v[{a}:{a+15}]")
    dma_x(0); dma_w(0)
    stamp(p, 3, "B")
    dma_w(1); dma_x(1); dma_w(2); dma_w(3); dma_x(2)
    stamp(p, 4, "B")
    p.I(f"s_mov_b32 s64, {f32(EPS)}")
    for rt in range(2):
        for bi in range(2):
            a = ACC + (rt*2+bi)*16
            val = "s64" if (typ == "q" or bi == 0) else "0"
            for i in range(16):
                p.I(f"v_mov_b32 v{a+i}, {val}")
    stamp(p, 1)
    p.I(f"s_waitcnt vmcnt({vm.wait_for([('x',0),('w',0)])})\ns_barrier")
    stamp(p, 2)
    read_frags(0)
    for j in range(32):
        waited = False
        if j + 1 < 32:
            if (j + 1) % 2 == 0:
                s1 = (j + 1) // 2
                n = vm.wait_for([("w", s1), ("x", (j + 1) >> 2)])
                p.I(f"s_waitcnt vmcnt({n}) lgkmcnt(0)\ns_barrier")
                waited = True
                if s1 + 3 < 16: dma_w(s1 + 3)
                if (j + 1) % 4 == 0:
                    c1 = (j + 1) // 4
                    if c1 + 2 < 8: dma_x(c1 + 2)
            read_frags(j + 1)
            if not waited: p.I("s_waitcnt lgkmcnt(6)")
        else:
            p.I("s_waitcnt lgkmcnt(0)")
        mfmas(j)
    stamp(p, 3)
    p.I(f"""
s_mov_b32 s66, {f32(L2E)}
s_mov_b32 s67, {f32(L2E)}
v_mov_b32 v16, {f32(-EPS*L2E)}
v_mov_b32 v17, {f32(-EPS*L2E)}
""")
    TMP = 128
    PK = 144
    if typ == "q":
        p.I(f"""
s_lshr_b32 s42, s13, 1
s_and_b32 s43, s13, 1
s_lshl_b32 s63, s8, 2
s_lshl_b32 s42, s42, 1
s_add_u32 s63, s63, s42
s_lshl_b32 s63, s63, 5
s_lshl_b32 s42, s14, 3
s_add_u32 s63, s63, s42
s_lshl_b32 s43, s43, 1
s_add_u32 s63, s63, s43
s_lshl_b32 s63, s63, 10
v_lshlrev_b32 v18, 4, v2
""")
        k = 0
        for rt in range(2):
            for bi in range(2):
                a = ACC + (rt*2+bi)*16
                o = PK + (k % 2) * 8
                phi_tile(p, a, 16, TMP, 66, 16, 64, o)
                p.I(f"s_add_u32 s65, s63, {rt*32768 + bi*4096}")
                p.I(f"buffer_store_dwordx4 v[{o}:{o+3}], v18, s[52:55], s65 offen")
                p.I(f"buffer_store_dwordx4 v[{o+4}:{o+7}], v18, s[52:55], s65 offen offset:1024")
                k += 1
        stamp(p, 4)
        stamp_flush(p, 0)
        p.I("s_endpgm")
    else:
        KVA = 176
        ZA = 192
        ONES = 208
        p.I(f"s_mov_b32 s42, 0x3f803f80")
        for i in range(4): p.I(f"v_mov_b32 v{ONES+i}, s42")
        for rt in range(2):
            ak = ACC + (rt*2+0)*16; av = ACC + (rt*2+1)*16
            ok = PK + rt*16; ov = ok + 8
            phi_tile(p, ak, 16, TMP, 66, 16, 64, ok)
            for i in range(0, 16, 2):
                p.I(f"v_cvt_pk_bf16_f32 v{ov+i//2}, v{av+i}, v{av+i+1}")
        first = True
        for rt in range(2):
            ok = PK + rt*16; ov = ok + 8
            for hf in range(2):
                c1 = "0" if first else f"v[{KVA}:{KVA+15}]"
                c2 = "0" if first else f"v[{ZA}:{ZA+15}]"
                p.I(f"v_mfma_f32_32x32x16_bf16 v[{KVA}:{KVA+15}], v[{ok+4*hf}:{ok+4*hf+3}], v[{ov+4*hf}:{ov+4*hf+3}], {c1}")
                p.I(f"v_mfma_f32_32x32x16_bf16 v[{ZA}:{ZA+15}], v[{ONES}:{ONES+3}], v[{ok+4*hf}:{ok+4*hf+3}], {c2}")
                first = False
        p.I("s_mov_b32 s42, 0xffff0000\ns_mov_b32 s43, 0xffff0000")
        SEL = 128
        for m in range(8):
            p.I(f"v_cndmask_b32 v{SEL+m}, v{KVA+m}, v{KVA+8+m}, s[42:43]")
        p.I(f"""
s_barrier
s_mul_i32 s63, s13, 2304
v_bfe_u32 v18, v2, 4, 1
v_lshlrev_b32 v18, 10, v18
v_lshrrev_b32 v19, 5, v2
v_lshl_add_u32 v18, v19, 9, v18
v_and_b32 v19, 15, v2
v_lshl_add_u32 v18, v19, 5, v18
v_add_u32 v18, s63, v18
ds_write_b128 v18, v[{SEL}:{SEL+3}]
ds_write_b128 v18, v[{SEL+4}:{SEL+7}] offset:16
v_lshlrev_b32 v19, 2, v2
v_add_u32 v19, s63, v19
v_and_b32 v20, 31, v2
v_lshlrev_b32 v20, 2, v20
v_add_u32 v20, s63, v20
ds_write_b32 v20, v{ZA} offset:2048
""")
        p.I("v_mov_b32 v21, 0\ns_mov_b32 s43, 0")
        p.L("L_g1_poll")
        p.I("""
buffer_load_dword v22, v21, s[56:59], 0 offen sc1
s_add_u32 s43, s43, 1
s_waitcnt vmcnt(0)
v_readfirstlane_b32 s42, v22
s_nop 3
s_lshr_b32 s65, s43, 16
s_or_b32 s42, s42, s65
s_cmp_eq_u32 s42, 0
s_cbranch_scc1 L_g1_poll
s_waitcnt lgkmcnt(0)
s_barrier
""")
        p.I(f"""
s_lshr_b32 s42, s13, 1
s_and_b32 s43, s13, 1
s_mul_i32 s63, s43, 2304
s_lshl_b32 s65, s42, 10
s_add_u32 s65, s65, s63
v_lshlrev_b32 v19, 2, v2
v_add_u32 v20, s65, v19
""")
        for i in range(4):
            p.I(f"ds_read_b32 v{24+i}, v20 offset:{256*i}")
            p.I(f"ds_read_b32 v{28+i}, v20 offset:{4608+256*i}")
        p.I(f"""
s_lshl_b32 s65, s42, 6
s_add_u32 s65, s65, s63
v_and_b32 v21, 15, v2
v_lshlrev_b32 v22, 2, v21
v_add_u32 v22, s65, v22
ds_read_b32 v32, v22 offset:2048
ds_read_b32 v33, v22 offset:{2048+4608}
""")
        p.I(f"""
s_lshl_b32 s63, s14, 2
s_lshl_b32 s43, s43, 1
s_add_u32 s63, s63, s43
s_add_u32 s63, s63, s42
s_mul_i32 s63, s63, {KVREC}
s_add_u32 s63, s63, {hex(WS_KV)}
v_bfe_u32 v22, v21, 2, 1
v_lshlrev_b32 v22, 5, v22
v_lshrrev_b32 v23, 3, v21
v_lshl_add_u32 v22, v23, 4, v22
v_and_b32 v23, 3, v21
v_lshl_add_u32 v22, v23, 2, v22
s_waitcnt lgkmcnt(0)
""")
        for i in range(4):
            p.I(f"v_add_f32 v{24+i}, v{24+i}, v{28+i}")
        p.I("v_add_f32 v32, v32, v33")
        for i in range(4):
            p.I(f"buffer_atomic_add_f32 v{24+i}, v19, s[52:55], s63 offen offset:{256*i}")
        p.I("""
s_mov_b64 exec, 0xffff
buffer_atomic_add_f32 v32, v22, s[52:55], s63 offen offset:1024
""")
        stamp(p, 4)
        stamp_flush(p, 0)
        p.I("s_endpgm")

def aux1(p):
    p.L("L_aux")
    p.I("""
s_sub_u32 s3, s2, 192
v_lshrrev_b32 v1, 6, v0
v_and_b32 v2, 63, v0
s_nop 0
v_readfirstlane_b32 s13, v1
s_waitcnt lgkmcnt(0)
""")
    stamp(p, 1, "B")
    srd(p, 52, S_WS, WS_SIZE)
    srd(p, 44, S_LAR, 131072)
    srd(p, 48, S_AIM, 131072)
    srd(p, 56, S_CRE, 131072)
    srd(p, 60, S_CIM, 131072)
    srd(p, 64, S_LDT, 1024)
    srd(p, 68, S_DSK, 1024)
    srd(p, 72, S_U, 0x200000)
    srd(p, 76, S_DBG, 256)
    p.I("""
s_lshr_b32 s4, s13, 1
s_lshl_b32 s6, s3, 1
s_add_u32 s4, s4, s6
s_and_b32 s5, s13, 1
s_lshl_b32 s6, s4, 8
s_lshl_b32 s7, s5, 7
s_add_u32 s6, s6, s7
s_lshl_b32 s7, s4, 1
v_lshlrev_b32 v3, 1, v2
v_mov_b32 v4, 0
buffer_load_ushort v8, v3, s[44:47], s6 offen
buffer_load_ushort v9, v3, s[48:51], s6 offen
buffer_load_ushort v10, v3, s[56:59], s6 offen
buffer_load_ushort v11, v3, s[60:63], s6 offen
buffer_load_ushort v12, v4, s[64:67], s7 offen
buffer_load_ushort v13, v4, s[68:71], s7 offen
""")
    stamp(p, 2, "B")
    p.I("s_cmp_lg_u32 s3, 0\ns_cbranch_scc1 L_aux_nozero")
    p.I(f"""
v_lshlrev_b32 v5, 4, v0
v_mov_b32 v16, 0
v_mov_b32 v17, 0
v_mov_b32 v18, 0
v_mov_b32 v19, 0
""")
    srd_off(p, 80, S_WS, WS_KV, 32 * KVREC)
    for i in range(9):
        p.I(f"s_movk_i32 s8, {i*4096}" if i * 4096 < 32768 else f"s_mov_b32 s8, {i*4096}")
        p.I(f"buffer_store_dwordx4 v[16:19], v5, s[80:83], s8 offen sc0 sc1")
    p.I("""
s_waitcnt vmcnt(0)
s_barrier
v_mov_b32 v5, 1
s_mov_b64 s[8:9], exec
v_cmp_eq_u32 vcc, 0, v0
s_and_b64 exec, exec, vcc
s_cbranch_execz L_aux_zdone
buffer_store_dword v5, v4, s[76:79], 0 offen sc0 sc1
""")
    p.L("L_aux_zdone")
    p.I("s_mov_b64 exec, s[8:9]")
    p.L("L_aux_nozero")
    p.I("s_cmp_ge_u32 s3, 64\ns_cbranch_scc1 L_aux_notr")
    R = 64
    p.I(f"""
s_lshl_b32 s8, s3, 2
s_add_u32 s8, s8, s13
s_lshr_b32 s9, s8, 3
s_and_b32 s8, s8, 7
s_lshl_b32 s10, s9, 16
s_lshl_b32 s11, s8, 7
s_add_u32 s10, s10, s11
v_lshrrev_b32 v5, 3, v2
v_and_b32 v6, 7, v2
v_lshlrev_b32 v7, 13, v5
v_lshl_add_u32 v7, v6, 4, v7
v_add_u32 v14, 4096, v7
""")
    for i in range(8):
        p.I(f"buffer_load_dwordx4 v[{R+4*i}:{R+4*i+3}], v{7 if i < 4 else 14}, s[72:75], s10 offen offset:{(i%4)*1024}")
    p.I(f"""
s_lshl_b32 s10, s8, 18
s_lshl_b32 s11, s9, 7
s_add_u32 s10, s10, s11
s_add_u32 s10, s10, {hex(WS_UT)}
v_lshlrev_b32 v7, 15, v6
v_lshl_add_u32 v7, v5, 4, v7
s_mov_b32 s8, 0x05040100
s_mov_b32 s9, 0x07060302
s_waitcnt vmcnt(0)
""")
    O = 96
    for j in range(8):
        for tp in range(4):
            p.I(f"v_perm_b32 v{O+4*j+tp}, v{R+4*(2*tp+1)+j//2}, v{R+4*(2*tp)+j//2}, s{8 + (j & 1)}")
        p.I(f"s_add_u32 s11, s10, {j*4096}")
        p.I(f"buffer_store_dwordx4 v[{O+4*j}:{O+4*j+3}], v7, s[52:55], s11 offen")
    p.L("L_aux_notr")
    stamp(p, 1)
    p.I(f"""
s_waitcnt vmcnt(0)
s_mov_b32 s8, {f32(L2E)}
v_lshlrev_b32 v8, 16, v8
v_lshlrev_b32 v9, 16, v9
v_lshlrev_b32 v10, 16, v10
v_lshlrev_b32 v11, 16, v11
v_lshlrev_b32 v12, 16, v12
v_lshlrev_b32 v13, 16, v13
v_mul_f32 v8, s8, v8
v_mul_f32 v12, s8, v12
v_exp_f32 v8, v8
v_exp_f32 v12, v12
v_cvt_pk_bf16_f32 v8, v8, v12
v_and_b32 v12, 0xffff0000, v8
v_lshlrev_b32 v8, 16, v8
v_mul_f32 v8, v8, v12
v_mul_f32 v8, {f32(-L2E)}, v8
v_mul_f32 v9, v9, v12
v_mul_f32 v9, 0.15915494309189535, v9
v_fract_f32 v9, v9
v_mul_f32 v10, v10, v12
v_mul_f32 v11, v11, v12
v_add_f32 v10, v10, v10
v_add_f32 v11, v11, v11
s_lshl_b32 s9, s13, 10
v_lshlrev_b32 v5, 2, v2
v_add_u32 v5, s9, v5
ds_write_b32 v5, v8
ds_write_b32 v5, v9 offset:256
ds_write_b32 v5, v10 offset:512
ds_write_b32 v5, v11 offset:768
v_lshrrev_b32 v6, 4, v2
v_lshlrev_b32 v6, 6, v6
v_add_u32 v6, s9, v6
v_and_b32 v7, 15, v2
v_cvt_f32_u32 v14, v7
v_cmp_eq_u32 vcc, 0, v2
s_cmp_eq_u32 s5, 0
s_cselect_b64 s[10:11], vcc, 0
v_cndmask_b32 v13, 0, v13, s[10:11]
s_waitcnt lgkmcnt(0)
""")
    PA, PB, PCR, PCI = 16, 32, 48, 64
    for arr, base in enumerate((PA, PB, PCR, PCI)):
        for q in range(4):
            p.I(f"ds_read_b128 v[{base+4*q}:{base+4*q+3}], v6 offset:{arr*256 + q*16}")
    D = 80
    FA = 100
    TM = 172
    for i in range(20): p.I(f"v_mov_b32 v{D+i}, 0")
    p.I("s_waitcnt lgkmcnt(0)")
    def pr(r): return f"v[{r}:{r+1}]"
    def chain(ks, pi, fb):
        n = 4*ks + 2*pi
        t = TM + pi*16
        Fr, Fi, X, Y, Hr, Hn, T1, T2 = t, t+2, t+4, t+6, t+8, t+10, t+12, t+14
        A = lambda r: fb + r*4 + 2*pi
        B = lambda r: fb + 20 + r*4 + 2*pi
        L = []
        L.append(f"v_pk_mul_f32 {pr(X)}, {pr(PA+n)}, v[14:15] op_sel_hi:[1,0]")
        L.append(f"v_pk_mul_f32 {pr(Y)}, {pr(PB+n)}, v[14:15] op_sel_hi:[1,0]")
        L.append(f"v_exp_f32 v{X}, v{X}")
        L.append(f"v_exp_f32 v{X+1}, v{X+1}")
        L.append(f"v_cos_f32 v{Fr}, v{Y}")
        L.append(f"v_cos_f32 v{Fr+1}, v{Y+1}")
        L.append(f"v_sin_f32 v{Fi}, v{Y}")
        L.append(f"v_sin_f32 v{Fi+1}, v{Y+1}")
        L.append(f"v_pk_mul_f32 {pr(Fr)}, {pr(Fr)}, {pr(X)}")
        L.append(f"v_pk_mul_f32 {pr(Fi)}, {pr(Fi)}, {pr(X)}")
        def cvtF(r):
            L.append(f"v_cvt_pk_bf16_f32 v{A(r)}, v{Fr}, v{Fr+1}")
            L.append(f"v_cvt_pk_bf16_f32 v{A(r)+1}, v{Fi}, v{Fi+1}")
        def cvtH(r):
            L.append(f"v_cvt_pk_bf16_f32 v{B(r)}, v{Hr}, v{Hr+1}")
            L.append(f"v_cvt_pk_bf16_f32 v{B(r)+1}, v{Hn}, v{Hn+1}")
        def sq():
            L.append(f"v_pk_mul_f32 {pr(T1)}, {pr(Fi)}, {pr(Fi)}")
            L.append(f"v_pk_add_f32 {pr(T2)}, {pr(Fr)}, {pr(Fr)}")
            L.append(f"v_pk_fma_f32 {pr(Fr)}, {pr(Fr)}, {pr(Fr)}, {pr(T1)} neg_lo:[0,0,1] neg_hi:[0,0,1]")
            L.append(f"v_pk_mul_f32 {pr(Fi)}, {pr(T2)}, {pr(Fi)}")
        cvtF(0); sq(); cvtF(1); sq(); cvtF(2); sq(); cvtF(3); sq(); cvtF(4)
        L.append(f"v_pk_mul_f32 {pr(T1)}, {pr(PCI+n)}, {pr(Fi)}")
        L.append(f"v_pk_mul_f32 {pr(T2)}, {pr(PCI+n)}, {pr(Fr)}")
        L.append(f"v_pk_fma_f32 {pr(Hr)}, {pr(PCR+n)}, {pr(Fr)}, {pr(T1)} neg_lo:[0,0,1] neg_hi:[0,0,1]")
        L.append(f"v_pk_fma_f32 {pr(Hn)}, {pr(PCR+n)}, {pr(Fi)}, {pr(T2)} neg_lo:[1,0,1] neg_hi:[1,0,1]")
        cvtH(0)
        def hmul():
            L.append(f"v_pk_mul_f32 {pr(T1)}, {pr(Hn)}, {pr(Fi)}")
            L.append(f"v_pk_mul_f32 {pr(T2)}, {pr(Hr)}, {pr(Fi)}")
            L.append(f"v_pk_fma_f32 {pr(Hr)}, {pr(Hr)}, {pr(Fr)}, {pr(T1)}")
            L.append(f"v_pk_fma_f32 {pr(Hn)}, {pr(Hn)}, {pr(Fr)}, {pr(T2)} neg_lo:[0,0,1] neg_hi:[0,0,1]")
        hmul(); cvtH(1); sq(); hmul(); cvtH(2); sq(); hmul(); cvtH(3)
        return L
    stamp(p, 2)
    stamp(p, 3, "B")
    for ks in range(4):
        fb = FA + (ks & 1) * 36
        c0 = chain(ks, 0, fb); c1 = chain(ks, 1, fb)
        for a, b in zip(c0, c1):
            p.I(a); p.I(b)
        for r in range(4):
            p.I(f"v_mfma_f32_16x16x32_bf16 v[{D+4*r}:{D+4*r+3}], v[{fb+4*r}:{fb+4*r+3}], v[{fb+20+4*r}:{fb+20+4*r+3}], v[{D+4*r}:{D+4*r+3}]")
        p.I(f"v_mfma_f32_16x16x32_bf16 v[{D+16}:{D+19}], v[{fb+16}:{fb+19}], v[{fb+32}:{fb+35}], v[{D+16}:{D+19}]")
        if ks == 0: stamp(p, 4, "B")
    TTB = 4096; TTS = 2816
    stamp(p, 3)
    p.I(f"""
s_mul_i32 s9, s13, {TTS}
s_add_u32 s9, s9, {TTB+16}
v_lshlrev_b32 v5, 6, v7
v_lshrrev_b32 v6, 4, v2
v_lshl_add_u32 v5, v6, 4, v5
v_add_u32 v5, s9, v5
v_mov_b32 v6, s9
v_mov_b32 v8, 0
v_add_f32 v{D}, v{D}, v13
ds_write_b128 v5, v[{D}:{D+3}]
s_mov_b32 exec_lo, 0xff00ff00
s_mov_b32 exec_hi, 0xff00ff00
ds_write_b128 v5, v[{D+4}:{D+7}] offset:512
ds_write_b128 v5, v[{D+8}:{D+11}] offset:1024
ds_write_b128 v5, v[{D+12}:{D+15}] offset:1536
s_mov_b32 exec_lo, 0
s_mov_b32 exec_hi, 0x8000
ds_write_b32 v6, v{D+16} offset:2560
v_add_u32 v6, -4, v6
ds_write_b32 v6, v8
s_mov_b64 exec, -1
s_waitcnt lgkmcnt(0)
s_barrier
""")
    p.I(f"""
s_and_b32 s9, s13, 2
s_mul_i32 s9, s9, {TTS}
s_add_u32 s9, s9, {TTB+16}
s_lshl_b32 s10, s4, 13
s_add_u32 s10, s10, {hex(WS_KT)}
s_add_u32 s11, s10, 4096
v_lshlrev_b32 v3, 4, v2
s_cmp_eq_u32 s5, 0
s_cbranch_scc0 L_aux_lo
""")
    p.I(f"""
v_sub_u32 v5, 575, v2
v_lshlrev_b32 v5, 2, v5
v_add_u32 v5, s9, v5
v_add_u32 v6, {TTS}, v5
ds_read2_b32 v[16:17], v5 offset0:64 offset1:65
ds_read2_b32 v[18:19], v6 offset0:64 offset1:65
ds_read2_b32 v[20:21], v5 offset0:0 offset1:1
ds_read2_b32 v[22:23], v6 offset0:0 offset1:1
s_mov_b32 s6, 0xaaaaaaaa
s_mov_b32 s7, 0xaaaaaaaa
s_waitcnt lgkmcnt(0)
v_pk_add_f32 v[16:17], v[16:17], v[18:19]
v_pk_add_f32 v[20:21], v[20:21], v[22:23]
""")
    for c in range(2):
        lo, hi = 16 + 4*c, 17 + 4*c
        X = 18 + 4*c
        o1, o0 = 24 + 8*c, 28 + 8*c
        p.I(f"""
v_cndmask_b32 v{X}, v{hi}, v{lo}, s[6:7]
v_cvt_pk_bf16_f32 v{o1}, v{hi}, v{hi}
v_cvt_pk_bf16_f32 v{o1+2}, v{lo}, v{lo}
v_cvt_pk_bf16_f32 v{o1+1}, v{hi}, v{X}
v_cvt_pk_bf16_f32 v{o0+1}, v{X}, v{lo}
v_mov_b32 v{o1+3}, v{o1+2}
v_mov_b32 v{o0}, v{o1}
v_mov_b32 v{o0+2}, v{o1+2}
v_mov_b32 v{o0+3}, v{o1+2}
buffer_store_dwordx4 v[{o1}:{o1+3}], v3, s[52:55], s11 offen offset:{1024*c}
buffer_store_dwordx4 v[{o0}:{o0+3}], v3, s[52:55], s10 offen offset:{1024*c}
""")
    stamp(p, 4)
    stamp_flush(p, 0)
    p.I("s_endpgm")
    p.L("L_aux_lo")
    p.I(f"""
v_lshlrev_b32 v5, 3, v2
v_sub_u32 v5, 2040, v5
v_add_u32 v5, s9, v5
v_add_u32 v6, {TTS}, v5
ds_read_b64 v[16:17], v5
ds_read_b64 v[18:19], v6
ds_read_b32 v20, v5 offset:8
ds_read_b32 v21, v6 offset:8
s_mov_b32 exec_hi, 0
v_lshlrev_b32 v5, 4, v2
v_sub_u32 v5, 1516, v5
v_add_u32 v5, s9, v5
v_add_u32 v6, {TTS}, v5
ds_read_b128 v[40:43], v5 offset:4
ds_read_b128 v[44:47], v6 offset:4
ds_read_b32 v48, v5 offset:20
ds_read_b32 v49, v6 offset:20
ds_read_b32 v50, v5
ds_read_b32 v51, v6
s_mov_b32 exec_lo, 0
s_mov_b32 exec_hi, -1
v_lshlrev_b32 v5, 5, v2
v_sub_u32 v5, 2012, v5
v_add_u32 v5, s9, v5
v_add_u32 v6, {TTS}, v5
ds_read_b128 v[56:59], v5 offset:4
ds_read_b128 v[60:63], v5 offset:20
ds_read_b128 v[64:67], v6 offset:4
ds_read_b128 v[68:71], v6 offset:20
ds_read_b32 v54, v5
ds_read_b32 v55, v6
s_waitcnt lgkmcnt(0)
v_pk_add_f32 v[56:57], v[56:57], v[64:65]
v_pk_add_f32 v[58:59], v[58:59], v[66:67]
v_pk_add_f32 v[60:61], v[60:61], v[68:69]
v_pk_add_f32 v[62:63], v[62:63], v[70:71]
v_add_f32 v55, v54, v55
s_mov_b32 exec_lo, -1
s_mov_b32 exec_hi, 0
v_pk_add_f32 v[40:41], v[40:41], v[44:45]
v_pk_add_f32 v[42:43], v[42:43], v[46:47]
v_add_f32 v63, v48, v49
v_add_f32 v50, v50, v51
s_mov_b32 s6, 0x80000000
s_mov_b32 s7, 0
v_cndmask_b32 v55, v40, v50, s[6:7]
v_mov_b32 v56, v40
v_mov_b32 v57, v40
v_mov_b32 v58, v41
v_mov_b32 v59, v42
v_mov_b32 v60, v42
v_mov_b32 v61, v42
v_mov_b32 v62, v43
s_mov_b64 exec, -1
v_pk_add_f32 v[16:17], v[16:17], v[18:19]
v_add_f32 v20, v20, v21
""")
    p.I("""
v_cvt_pk_bf16_f32 v24, v20, v20
v_cvt_pk_bf16_f32 v25, v17, v17
v_cvt_pk_bf16_f32 v26, v17, v16
v_cvt_pk_bf16_f32 v27, v16, v16
v_cvt_pk_bf16_f32 v28, v20, v17
v_mov_b32 v29, v25
v_mov_b32 v30, v27
v_mov_b32 v31, v27
buffer_store_dwordx4 v[24:27], v3, s[52:55], s11 offen offset:2048
buffer_store_dwordx4 v[28:31], v3, s[52:55], s10 offen offset:2048
""")
    p.I("""
v_cvt_pk_bf16_f32 v32, v63, v62
v_cvt_pk_bf16_f32 v33, v61, v60
v_cvt_pk_bf16_f32 v34, v59, v58
v_cvt_pk_bf16_f32 v35, v57, v56
v_cvt_pk_bf16_f32 v36, v62, v61
v_cvt_pk_bf16_f32 v37, v60, v59
v_cvt_pk_bf16_f32 v38, v58, v57
v_cvt_pk_bf16_f32 v39, v56, v55
buffer_store_dwordx4 v[32:35], v3, s[52:55], s11 offen offset:3072
buffer_store_dwordx4 v[36:39], v3, s[52:55], s10 offen offset:3072
""")
    stamp(p, 4)
    stamp_flush(p, 0)
    p.I("s_endpgm")

def conv(p):
    p.L("L_conv")
    WST = 17696; R1O = 4224; U0O = 8448; U1O = 13088
    p.I(f"""
s_and_b32 s3, s2, 7
s_lshr_b32 s4, s2, 3
s_and_b32 s5, s4, 15
s_bfe_u32 s6, s4, 0x10004
s_lshl_b32 s7, s3, 6
s_lshl_b32 s5, s5, 2
s_add_u32 s7, s7, s5
v_lshrrev_b32 v1, 6, v0
v_and_b32 v2, 63, v0
s_nop 0
v_readfirstlane_b32 s13, v1
s_nop 3
s_add_u32 s8, s7, s13
s_mul_i32 s9, s13, {WST}
s_lshl_b32 s10, s8, 13
s_add_u32 s10, s10, {hex(WS_KT)}
s_add_u32 s11, s10, 4096
s_lshl_b32 s12, s8, 12
s_add_u32 s12, s12, {hex(WS_UT)}
s_sub_u32 s14, s12, 4
v_lshlrev_b32 v3, 4, v2
s_waitcnt lgkmcnt(0)
""")
    stamp(p, 1, "B")
    srd(p, 52, S_WS, WS_SIZE)
    srd(p, 44, S_OUT, 0x400000)
    VA, VB, VY = 4, 5, 6
    p.I(f"""
v_and_b32 v8, 15, v2
v_lshrrev_b32 v9, 4, v2
v_and_b32 v10, 1, v2
v_lshrrev_b32 v11, 1, v8
s_movk_i32 s15, {R1O}
v_mul_lo_u32 v12, v10, s15
v_lshlrev_b32 v13, 3, v11
v_sub_u32 v12, v12, v13
v_lshl_add_u32 v12, v9, 4, v12
s_add_u32 s15, s9, {2*2044 - 64*63}
v_add_u32 v{VA}, s15, v12
s_movk_i32 s15, {U0O - U1O}
v_mul_lo_u32 v12, v10, s15
v_lshl_add_u32 v12, v11, 6, v12
v_lshl_add_u32 v12, v9, 4, v12
s_add_u32 s15, s9, {U1O + 64}
v_add_u32 v{VB}, s15, v12
v_lshlrev_b32 v12, 6, v11
v_lshl_add_u32 v12, v10, 2, v12
v_lshl_add_u32 v12, v9, 4, v12
v_add_u32 v{VY}, s9, v12
v_add_u32 v7, 1024, v{VY}
v_mov_b32 v16, 0
v_mov_b32 v17, 0
v_mov_b32 v18, 0
v_mov_b32 v19, 0
v_add_u32 v12, s9, v3
""")
    p.I("s_cmp_eq_u32 s6, 0\ns_cbranch_scc0 L_conv_b")
    for st, tiles in (("a", [7, 6, 1, 0]), ("b", [5, 4, 3, 2])):
        if st == "b": p.L("L_conv_b")
        tmax = max(tiles)
        k0 = 0 if tmax == 7 else 1
        nu = 4 if tmax == 7 else 3
        p.I(f"s_add_u32 m0, s9, {U0O+512}")
        for i in range(nu): p.I(f"buffer_load_dwordx4 v3, s[52:55], s12 offen offset:{1024*i} lds")
        p.I(f"s_add_u32 m0, s9, {U1O+512}")
        for i in range(nu): p.I(f"buffer_load_dwordx4 v3, s[52:55], s14 offen offset:{1024*i} lds")
        p.I(f"s_add_u32 m0, s9, 0")
        for i in range(k0, 4): p.I(f"buffer_load_dwordx4 v3, s[52:55], s10 offen offset:{1024*i} lds")
        p.I(f"s_add_u32 m0, s9, {R1O}")
        for i in range(k0, 4): p.I(f"buffer_load_dwordx4 v3, s[52:55], s11 offen offset:{1024*i} lds")
        stamp(p, 2, "B")
        p.I(f"""
s_mov_b32 exec_hi, 0
ds_write_b128 v12, v[16:19] offset:{U0O}
ds_write_b128 v12, v[16:19] offset:{U1O}
s_mov_b32 exec_lo, 15
ds_write_b128 v12, v[16:19] offset:4096
ds_write_b128 v12, v[16:19] offset:{R1O+4096}
s_mov_b64 exec, -1
""")
        ACC = 20
        FR = 40
        for i in range(16): p.I(f"v_mov_b32 v{ACC+i}, 0")
        stamp(p, 1)
        p.I(f"""
s_waitcnt vmcnt(0)
s_mov_b64 exec, 1
ds_write_b32 v12, v16 offset:{U1O+512}
s_mov_b64 exec, -1
s_waitcnt lgkmcnt(0)
""")
        nfr = tmax + 1
        def reads(phi):
            b = FR + (phi & 1) * 64
            L = []
            for i in range(nfr):
                m = tmax - i
                bp = phi + 8 * i
                L.append(f"ds_read_b64 v[{b+4*i}:{b+4*i+1}], v{VA} offset:{64*(63-bp)}")
                L.append(f"ds_read_b64 v[{b+4*i+2}:{b+4*i+3}], v{VA} offset:{64*(63-bp)+8}")
                L.append(f"ds_read_b128 v[{b+32+4*m}:{b+32+4*m+3}], v{VB} offset:{512*m + 64*(7-phi)}")
            return L
        def mf(phi):
            b = FR + (phi & 1) * 64
            L = []
            for ti, T in enumerate(tiles):
                for i in range(T + 1):
                    a = ACC + 4*ti
                    L.append(f"v_mfma_f32_16x16x32_bf16 v[{a}:{a+3}], v[{b+4*i}:{b+4*i+3}], v[{b+32+4*(T-i)}:{b+32+4*(T-i)+3}], v[{a}:{a+3}]")
            return L
        stamp(p, 2)
        for r in reads(0): p.I(r)
        for phi in range(8):
            p.I("s_waitcnt lgkmcnt(0)")
            rl = reads(phi + 1) if phi < 7 else []
            ml = mf(phi)
            ri = 0
            for m in ml:
                p.I(m)
                for _ in range(2):
                    if ri < len(rl):
                        p.I(rl[ri]); ri += 1
            assert ri == len(rl)
        stamp(p, 3)
        for ti in range(4):
            a = ACC + 4*ti
            p.I(f"v_cvt_pk_bf16_f32 v{40+2*ti}, v{a}, v{a+1}")
            p.I(f"v_cvt_pk_bf16_f32 v{41+2*ti}, v{a+2}, v{a+3}")
        for ti in range(4):
            va = VY if ti < 2 else 7
            o = (ti & 1) * 128
            p.I(f"ds_write2_b32 v{va}, v{40+2*ti}, v{41+2*ti} offset0:{o} offset1:{o+2}")
        p.I(f"""
s_movk_i32 s15, {tiles[0]}
s_cmp_eq_u32 s13, 1
s_cselect_b32 s15, {tiles[1]}, s15
s_cmp_eq_u32 s13, 2
s_cselect_b32 s15, {tiles[2]}, s15
s_cmp_eq_u32 s13, 3
s_cselect_b32 s15, {tiles[3]}, s15
s_lshl_b32 s15, s15, 19
s_lshl_b32 s7, s7, 1
s_add_u32 s15, s15, s7
s_add_u32 s15, s15, 1024
v_lshlrev_b32 v8, 3, v0
v_lshlrev_b32 v9, 13, v2
v_add_u32 v10, 4096, v9
s_mov_b32 s8, 0x05040100
s_mov_b32 s9, 0x07060302
s_waitcnt lgkmcnt(0)
s_barrier
""")
        for c in range(4):
            p.I(f"ds_read_b64 v[{48+2*c}:{49+2*c}], v8 offset:{c*WST}")
        p.I("s_waitcnt lgkmcnt(0)")
        for t in range(4):
            d = t >> 1; sel = 8 + (t & 1)
            p.I(f"v_perm_b32 v{56+2*t}, v{50+d}, v{48+d}, s{sel}")
            p.I(f"v_perm_b32 v{57+2*t}, v{54+d}, v{52+d}, s{sel}")
            p.I(f"buffer_store_dwordx2 v[{56+2*t}:{57+2*t}], v{9 if t < 2 else 10}, s[44:47], s15 offen offset:{(t&1)*2048}")
        stamp(p, 4)
        stamp_flush(p, 1)
        p.I("s_endpgm")

def gemm2(p):
    p.L("L_g2")
    KVL = 49152
    p.I(f"""
s_sub_u32 s2, s2, 256
s_and_b32 s3, s2, 7
s_lshr_b32 s4, s2, 3
s_and_b32 s5, s4, 3
s_lshl_b32 s3, s3, 2
s_add_u32 s3, s3, s5
s_lshr_b32 s4, s4, 2
v_lshrrev_b32 v1, 6, v0
v_and_b32 v2, 63, v0
s_nop 0
v_readfirstlane_b32 s13, v1
s_nop 3
s_and_b32 s5, s13, 1
s_lshr_b32 s6, s13, 1
v_lshlrev_b32 v3, 4, v0
v_lshlrev_b32 v4, 4, v2
s_waitcnt lgkmcnt(0)
""")
    stamp(p, 1, "B")
    srd(p, 52, S_WS, WS_SIZE)
    srd_off(p, 56, S_WS, WS_KV, 32 * KVREC)
    srd(p, 44, S_OUT, 0x400000)
    srd(p, 48, S_WO, 0x80000)
    vm = VM()
    KVT = 128
    for i in range(9):
        p.I(f"s_mov_b32 s7, {i*4096}")
        p.I(f"buffer_load_dwordx4 v[{KVT+4*i}:{KVT+4*i+3}], v3, s[56:59], s7 offen")
    vm.issue("kv", 9)
    stamp(p, 2, "B")
    PQ = 64
    p.I(f"""
s_lshl_b32 s7, s3, 1
s_add_u32 s7, s7, s5
s_lshl_b32 s7, s7, 5
s_lshl_b32 s8, s6, 4
s_add_u32 s7, s7, s8
s_lshl_b32 s7, s7, 10
""")
    for h in range(16):
        if h % 4 == 0 and h > 0: p.I("s_add_u32 s7, s7, 4096")
        p.I(f"buffer_load_dwordx4 v[{PQ+4*h}:{PQ+4*h+3}], v4, s[52:55], s7 offen offset:{(h%4)*1024}")
        vm.issue(("pq", h // 4))
    stamp(p, 3, "B")
    p.I(f"""
s_lshl_b32 s7, s6, 8
s_lshl_b32 s8, s5, 5
s_add_u32 s7, s7, s8
s_lshl_b32 s7, s7, 10
s_lshl_b32 s8, s4, 7
s_add_u32 s7, s7, s8
v_lshrrev_b32 v8, 3, v2
v_lshlrev_b32 v8, 10, v8
v_add_u32 v8, s7, v8
v_and_b32 v9, 7, v2
v_bfe_u32 v10, v2, 4, 1
v_lshlrev_b32 v10, 2, v10
v_xor_b32 v9, v9, v10
v_lshl_add_u32 v5, v9, 4, v8
s_lshl_b32 s8, s6, 13
s_lshl_b32 s9, s5, 12
s_add_u32 s9, s9, s8
""")
    def dma(st):
        base = st * 16384
        p.I(f"s_add_u32 m0, s9, {base}")
        for ii in range(4):
            p.I(f"s_mov_b32 s7, {st*65536 + ii*7168}")
            p.I(f"buffer_load_dwordx4 v5, s[48:51], s7 offen offset:{ii*1024} lds")
        vm.issue(("wo", st), 4)
    dma(0); dma(1); dma(2)
    stamp(p, 4, "B")
    p.I(f"""
v_bfe_u32 v8, v2, 2, 2
v_lshrrev_b32 v9, 5, v2
v_lshl_add_u32 v9, v9, 2, v8
v_lshlrev_b32 v9, 7, v9
v_lshrrev_b32 v8, 1, v8
v_lshl_add_u32 v9, v8, 6, v9
v_bfe_u32 v8, v2, 4, 1
v_lshl_add_u32 v9, v8, 5, v9
v_and_b32 v8, 3, v2
v_lshl_add_u32 v9, v8, 3, v9
v_add_u32 v6, s8, v9
v_xor_b32 v7, 64, v6
v_lshrrev_b32 v9, 5, v2
v_and_b32 v8, 15, v2
v_lshl_add_u32 v8, v9, 4, v8
v_lshlrev_b32 v8, 4, v8
v_lshlrev_b32 v9, 4, v9
v_add_u32 v9, 512, v9
s_mov_b32 s10, 0xffff0000
s_mov_b32 s11, 0xffff0000
v_cndmask_b32 v11, v8, v9, s[10:11]
s_mul_i32 s7, s6, {16*544}
s_add_u32 s7, s7, {KVL}
v_add_u32 v11, s7, v11
v_lshlrev_b32 v12, 3, v0
v_add_u32 v12, {KVL}, v12
""")
    ACC = 16
    for i in range(32): p.I(f"v_mov_b32 v{ACC+i}, 0")
    stamp(p, 1)
    for i in range(9):
        p.I(f"s_waitcnt vmcnt({len(vm.q) - 1 - i})")
        r = KVT + 4*i
        p.I(f"v_cvt_pk_bf16_f32 v{r}, v{r}, v{r+1}\nv_cvt_pk_bf16_f32 v{r+1}, v{r+2}, v{r+3}")
        p.I(f"ds_write_b64 v12, v[{r}:{r+1}] offset:{2048*i}")
    p.I("s_waitcnt lgkmcnt(0)\ns_barrier")
    KZ = 128
    for h in range(16):
        p.I(f"ds_read_b128 v[{KZ+4*h}:{KZ+4*h+3}], v11 offset:{544*h}")
        if h == 7: p.I("s_waitcnt lgkmcnt(4)")
    OD = 192
    WF = 224
    OF = 48
    RC = 56
    p.I(f"s_mov_b32 s12, {f32(EPS)}")
    def omfma(h):
        d = OD + (h & 1) * 16
        p.I(f"v_mfma_f32_32x32x16_bf16 v[{d}:{d+15}], v[{KZ+4*h}:{KZ+4*h+3}], v[{PQ+4*h}:{PQ+4*h+3}], 0")
    def wreads(h):
        st, hl = h // 4, h % 4
        base = st * 16384
        b = WF + (h & 1) * 8
        for cti in range(2):
            for jj in range(2):
                r = b + cti*4 + jj*2
                p.I(f"ds_read_b64_tr_b16 v[{r}:{r+1}], v{6+cti} offset:{base + (16*hl + 8*jj)*128}")
    def oscale(h):
        d = OD + (h & 1) * 16
        o = OF + (h & 1) * 4
        p.I(f"v_add_f32 v{RC}, s12, v{d+8}\nv_rcp_f32 v{RC}, v{RC}")
        for i in range(0, 8, 2):
            p.I(f"v_pk_mul_f32 v[{d+i}:{d+i+1}], v[{d+i}:{d+i+1}], v[{RC}:{RC+1}] op_sel_hi:[1,0]")
        for i in range(0, 8, 2):
            p.I(f"v_cvt_pk_bf16_f32 v{o+i//2}, v{d+i}, v{d+i+1}")
    def main(h):
        b = WF + (h & 1) * 8
        o = OF + (h & 1) * 4
        for cti in range(2):
            a = ACC + cti*16
            p.I(f"v_mfma_f32_32x32x16_bf16 v[{a}:{a+15}], v[{b+cti*4}:{b+cti*4+3}], v[{o}:{o+3}], v[{a}:{a+15}]")
    p.I(f"s_waitcnt vmcnt({vm.wait_for([('wo',0),('pq',3)])}) lgkmcnt(0)\ns_barrier")
    stamp(p, 2)
    dma(3)
    omfma(0)
    wreads(0)
    for h in range(16):
        if h + 1 < 16: omfma(h + 1)
        oscale(h)
        if h + 1 < 16:
            if (h + 1) % 4 == 0:
                p.I(f"s_waitcnt vmcnt({vm.wait_for([('wo',(h+1)//4)])})\ns_barrier")
            wreads(h + 1)
            p.I("s_waitcnt lgkmcnt(4)")
        else:
            p.I("s_waitcnt lgkmcnt(0)")
        main(h)
    stamp(p, 3)
    p.I(f"""
s_lshl_b32 s7, s13, 12
v_add_u32 v8, s7, v4
s_xor_b32 s7, s7, 8192
v_add_u32 v9, s7, v4
s_cmp_eq_u32 s6, 0
s_cbranch_scc1 L_g2_k0
""")
    for kh in (1, 0):
        if kh == 0: p.L("L_g2_k0")
        keep = ACC + kh*16; send = ACC + (1-kh)*16
        for i in range(4):
            p.I(f"ds_write_b128 v8, v[{send+4*i}:{send+4*i+3}] offset:{1024*i}")
        p.I(f"""
s_lshl_b32 s7, s3, 6
s_lshl_b32 s10, s5, 5
s_add_u32 s7, s7, s10
s_lshl_b32 s7, s7, 11
s_lshl_b32 s10, s4, 7
s_add_u32 s7, s7, s10
s_add_u32 s7, s7, {kh*64}
v_and_b32 v10, 31, v2
v_lshlrev_b32 v10, 11, v10
v_lshrrev_b32 v11, 5, v2
v_lshl_add_u32 v10, v11, 4, v10
s_waitcnt lgkmcnt(0)
s_barrier
""")
        for i in range(4):
            p.I(f"ds_read_b128 v[{64+4*i}:{64+4*i+3}], v9 offset:{1024*i}")
        p.I("s_waitcnt lgkmcnt(0)")
        for i in range(0, 16, 2):
            p.I(f"v_pk_add_f32 v[{keep+i}:{keep+i+1}], v[{keep+i}:{keep+i+1}], v[{64+i}:{64+i+1}]")
        for i in range(0, 16, 2):
            p.I(f"v_cvt_pk_bf16_f32 v{80+i//2}, v{keep+i}, v{keep+i+1}")
        for jp in range(2):
            b = 80 + 4*jp
            p.I(f"v_permlane32_swap_b32 v{b}, v{b+2}\nv_permlane32_swap_b32 v{b+1}, v{b+3}")
            p.I(f"buffer_store_dwordx4 v[{b}:{b+3}], v10, s[44:47], s7 offen offset:{32*jp}")
        stamp(p, 4)
        stamp_flush(p, 1)
        p.I("s_endpgm")

HDR = """; generated by gen.py  (hand-designed CDNA4 kernels: K1 = QKV GEMM + S4D kernel generation, K2 = out GEMM + causal conv)
; @launch kernel=k1_kernel grid=(448,1,1) block=(256,1,1) lds=81920
; @launch kernel=k2_kernel grid=(512,1,1) block=(256,1,1) lds=81920
.amdgcn_target "amdgcn-amd-amdhsa--gfx950"
.text
"""
def kd(name, vg):
    return f"""
.amdhsa_kernel {name}
  .amdhsa_next_free_vgpr {vg}
  .amdhsa_next_free_sgpr {102 if STAMP else 96}
  .amdhsa_accum_offset {vg}
  .amdhsa_group_segment_fixed_size 0
  .amdhsa_kernarg_size 104
  .amdhsa_user_sgpr_count 2
  .amdhsa_user_sgpr_kernarg_segment_ptr 1
  .amdhsa_system_sgpr_workgroup_id_x 1
.end_amdhsa_kernel
"""
def build():
    out = HDR
    p = Prog()
    p.raw(".globl k1_kernel\n.p2align 8\n.type k1_kernel,@function\nk1_kernel:")
    p.I("s_cmp_ge_u32 s2, 448\ns_cbranch_scc1 L_k1_exit")
    load_args(p)
    p.I("s_cmp_ge_u32 s2, 192\ns_cbranch_scc1 L_aux")
    gemm1(p)
    aux1(p)
    p.L("L_k1_exit"); p.I("s_endpgm")
    p.raw(".globl k2_kernel\n.p2align 8\n.type k2_kernel,@function\nk2_kernel:")
    p.I("s_cmp_ge_u32 s2, 512\ns_cbranch_scc1 L_k2_exit")
    load_args(p)
    p.I("s_cmp_ge_u32 s2, 256\ns_cbranch_scc1 L_g2")
    conv(p)
    gemm2(p)
    p.L("L_k2_exit"); p.I("s_endpgm")
    out += p.render()
    out += '.section .rodata,"a"\n.p2align 6\n' + kd("k1_kernel", 256) + ".p2align 6\n" + kd("k2_kernel", 256)
    return out
if __name__ == "__main__":
    if "--stamp" in sys.argv:
        STAMP = True; sys.argv.remove("--stamp")
    for a in list(sys.argv):
        if a.startswith("--set="):
            STAMP_SET = a[6:]; sys.argv.remove(a)
    dst = sys.argv[1] if len(sys.argv) > 1 else "k.s"
    open(dst, "w").write(build())
    print("wrote", dst)
```

```python
import sys, struct
sys.path.insert(0, 'work')
from asmlib import *

WS_PQ = 0x0
WS_KV = 0x200000
WS_KT = 0x300000
WS_UT = 0x800000
WS_SIZE = 0x1000000
KVREC = 1088
L2E = 1.4426950408889634
EPS = 1e-6
def f32(x): return "0x%08x" % struct.unpack("<I", struct.pack("<f", x))[0]

def srd(p, d, lo, size):
    p.I(f"""
s_mov_b32 s{d}, s{lo}
s_mov_b32 s{d+1}, s{lo+1}
s_mov_b32 s{d+2}, {hex(size)}
s_mov_b32 s{d+3}, 0x00020000""")

def srd_off(p, d, lo, off, size):
    p.I(f"""
s_add_u32 s{d}, s{lo}, {hex(off)}
s_addc_u32 s{d+1}, s{lo+1}, 0
s_mov_b32 s{d+2}, {hex(size)}
s_mov_b32 s{d+3}, 0x00020000""")

def load_args(p):
    stamp_start(p)
    p.I("""
s_load_dwordx16 s[16:31], s[0:1], 0
s_load_dwordx8 s[32:39], s[0:1], 64
s_load_dwordx2 s[40:41], s[0:1], 96""")
S_X, S_W, S_WO, S_U, S_LAR, S_AIM, S_CRE, S_CIM, S_LDT, S_DSK, S_OUT, S_DBG, S_WS = 16, 18, 20, 22, 24, 26, 28, 30, 32, 34, 36, 38, 40

STAMP = False
ROT = False
TOUCH = True
G1_PRE = 4
G1_PRE2 = 1
WS_ST = 0xC00000
STAMP_SET = "A"
def stamp(p, idx, sets="A"):
    if not STAMP or STAMP_SET not in sets: return
    p.I(f"s_memtime s[{84+2*idx}:{85+2*idx}]")
def stamp_start(p):
    if not STAMP: return
    p.I("s_memrealtime s[96:97]\ns_memtime s[84:85]\ns_mov_b32 s100, s2")
    for i in range(86, 96): p.I(f"s_mov_b32 s{i}, 0")
def stamp_flush(p, kern):
    if not STAMP: return
    p.I(f"""
s_waitcnt vmcnt(0) lgkmcnt(0)
s_memtime s[94:95]
s_memrealtime s[98:99]
s_mov_b64 exec, -1
s_mov_b32 s44, s40
s_mov_b32 s45, s41
s_mov_b32 s46, {hex(WS_SIZE)}
s_mov_b32 s47, 0x00020000
v_lshrrev_b32 v250, 6, v0
v_lshlrev_b32 v250, 6, v250
s_lshl_b32 s48, s100, 8
s_add_u32 s48, s48, {hex(WS_ST + kern*0x100000)}
s_waitcnt lgkmcnt(0)
""")
    for q in range(4):
        for i in range(4):
            p.I(f"v_mov_b32 v{232+4*q+i}, s{84+4*q+i}")
    p.I("s_mov_b64 exec, 1")
    for q in range(4):
        p.I(f"buffer_store_dwordx4 v[{232+4*q}:{235+4*q}], v250, s[44:47], s48 offen offset:{16*q}")

class VM:
    def __init__(self): self.q = []
    def issue(self, tag, n=1): self.q += [tag] * n
    def wait_for(self, tags):
        last = -1
        for t in tags: assert t in self.q, t
        for i, t in enumerate(self.q):
            if t in tags: last = i
        n = len(self.q) - 1 - last
        assert n <= 63
        return n

def phi_tile(p, acc, n, tmp, s_l2e, s_nel2e, s_eps, out):
    for i in range(0, n, 2):
        p.I(f"v_pk_fma_f32 v[{tmp+i}:{tmp+i+1}], v[{acc+i}:{acc+i+1}], s[{s_l2e}:{s_l2e+1}], v[{s_nel2e}:{s_nel2e+1}]")
    for i in range(n):
        p.I(f"v_exp_f32 v{tmp+i}, v{tmp+i} clamp")
        p.I(f"v_max_f32 v{acc+i}, s{s_eps}, v{acc+i}")
    for i in range(0, n, 2):
        p.I(f"v_pk_add_f32 v[{acc+i}:{acc+i+1}], v[{acc+i}:{acc+i+1}], v[{tmp+i}:{tmp+i+1}]")
    for i in range(0, n, 2):
        p.I(f"v_cvt_pk_bf16_f32 v{out+i//2}, v{acc+i}, v{acc+i+1}")

def gemm1(p):
    p.L("L_g1")
    p.I("""
s_sub_u32 s2, s2, 256
s_and_b32 s3, s2, 7
s_lshr_b32 s4, s2, 3
s_lshr_b32 s5, s3, 1
s_and_b32 s6, s3, 1
s_and_b32 s7, s4, 3
s_lshl_b32 s8, s5, 2
s_add_u32 s8, s8, s7
s_lshr_b32 s9, s4, 2
s_lshl_b32 s10, s7, 1
s_add_u32 s10, s10, s9
s_and_b32 s10, s10, 7
v_lshrrev_b32 v1, 6, v0
v_and_b32 v2, 63, v0
s_nop 0
v_readfirstlane_b32 s13, v1
""")
    p.I("""
s_lshl_b32 s14, s6, 1
s_add_u32 s14, s14, s9
s_lshl_b32 s11, s14, 8
s_movk_i32 s12, 128
s_cmp_lt_u32 s9, 2
s_cbranch_scc1 L_g1_segdone
s_lshl_b32 s14, s6, 2
s_add_u32 s14, s14, s9
s_sub_u32 s14, s14, 2
s_lshl_b32 s11, s14, 7
s_add_u32 s11, s11, 1024
s_movk_i32 s12, 1024
""")
    p.L("L_g1_segdone")
    VX, VW, VAX, VAW = 4, 8, 10, 14
    T = 16
    p.I(f"""
s_lshl_b32 s15, s8, 7
s_lshl_b32 s42, s13, 5
s_add_u32 s15, s15, s42
s_lshl_b32 s15, s15, 10
v_lshrrev_b32 v{T}, 3, v2
v_lshlrev_b32 v{T}, 10, v{T}
v_add_u32 v{T}, s15, v{T}
v_and_b32 v{T+1}, 7, v2
v_lshrrev_b32 v{T+2}, 4, v2
v_xor_b32 v{T+3}, v{T+1}, v{T+2}
v_lshl_add_u32 v{VX}, v{T+3}, 4, v{T}
v_xor_b32 v{T+3}, 4, v{T+3}
v_lshl_add_u32 v{VX+1}, v{T+3}, 4, v{T}
v_add_u32 v{VX+1}, 7168, v{VX+1}
v_add_u32 v{VX+2}, 14336, v{VX}
v_add_u32 v{VX+3}, 14336, v{VX+1}
""")
    p.I(f"""
s_lshl_b32 s42, s13, 3
v_add_u32 v{T}, s42, v{T+2}
s_movk_i32 s42, 3072
v_mul_lo_u32 v{T}, v{T}, s42
v_add_u32 v{T}, s11, v{T}
v_bfe_u32 v{T+1}, v2, 2, 2
v_xor_b32 v{T+1}, v{T+1}, v{T+2}
v_lshrrev_b32 v{T+3}, 1, v{T+1}
v_mul_lo_u32 v{T+3}, v{T+3}, s12
v_add_u32 v{T}, v{T}, v{T+3}
v_and_b32 v{T+1}, 1, v{T+1}
v_lshl_add_u32 v{T}, v{T+1}, 6, v{T}
v_and_b32 v{T+1}, 3, v2
v_lshl_add_u32 v{VW}, v{T+1}, 4, v{T}
v_add_u32 v{VW+1}, {4*3072-1024}, v{VW}
""")
    p.I(f"""
s_lshr_b32 s42, s13, 1
s_and_b32 s43, s13, 1
s_lshl_b32 s42, s42, 6
v_and_b32 v{T}, 31, v2
v_add_u32 v{T+1}, s42, v{T}
v_lshlrev_b32 v{T+1}, 7, v{T+1}
v_bfe_u32 v{T+2}, v2, 1, 3
v_lshrrev_b32 v{T+3}, 5, v2
v_xor_b32 v{T+2}, v{T+2}, v{T+3}
""")
    for kk in range(4):
        p.I(f"""
v_xor_b32 v{T+3}, {2*kk}, v{T+2}
v_lshl_add_u32 v{VAX+kk}, v{T+3}, 4, v{T+1}""")
    p.I(f"""
v_bfe_u32 v{T}, v2, 2, 2
v_lshrrev_b32 v{T+1}, 5, v2
v_lshl_add_u32 v{T+1}, v{T+1}, 3, v{T}
v_lshlrev_b32 v{T+1}, 8, v{T+1}
v_xor_b32 v{T+2}, s43, v{T}
v_lshl_add_u32 v{T+1}, v{T+2}, 6, v{T+1}
v_bfe_u32 v{T+2}, v2, 4, 1
v_lshl_add_u32 v{T+1}, v{T+2}, 5, v{T+1}
v_and_b32 v{T+2}, 3, v2
v_lshl_add_u32 v{T+1}, v{T+2}, 3, v{T+1}
v_add_u32 v{VAW}, 49152, v{T+1}
v_xor_b32 v{VAW+1}, 128, v{VAW}
""")
    stamp(p, 1, "B")
    p.I("s_waitcnt lgkmcnt(0)")
    stamp(p, 2, "B")
    srd(p, 44, S_X, 0x200000)
    srd(p, 48, S_W, 1572864)
    srd(p, 52, S_WS, WS_SIZE)
    srd(p, 56, S_DBG, 256)
    p.I("""
s_lshl_b32 s60, s13, 12
s_lshl_b32 s61, s13, 11
s_add_u32 s61, s61, 49152
s_lshl_b32 s62, s10, 1
""")
    p.I("s_cmp_lt_u32 s9, 2\ns_cbranch_scc1 L_g1q")
    for typ in ("kv", "q"):
        if typ == "q": p.L("L_g1q")
        gemm1_main(p, typ, VX, VW, VAX, VAW)

def gemm1_main(p, typ, VX, VW, VAX, VAW):
    vm = VM()
    FB = 32
    ACC = 64
    FBS = [32, 48, 224]
    def dma_x(c):
        if ROT:
            p.I(f"""
s_add_u32 s63, s10, {c}
s_and_b32 s63, s63, 7
s_lshl_b32 s63, s63, 7""")
        else:
            p.I(f"s_movk_i32 s63, {c*128}")
        p.I(f"s_add_u32 m0, s60, {(c%3)*16384}")
        for ii in range(4):
            p.I(f"buffer_load_dwordx4 v{VX+ii}, s[44:47], s63 offen offset:{ii*1024} lds")
        vm.issue(("x", c), 4)
    def dma_w(s):
        if ROT:
            p.I(f"""
s_add_u32 s63, s62, {s}
s_and_b32 s63, s63, 15
s_mul_i32 s63, s63, 98304""")
        else:
            p.I(f"s_mov_b32 s63, {s*98304}")
        p.I(f"s_add_u32 m0, s61, {(s%4)*8192}")
        for ii in range(2):
            p.I(f"buffer_load_dwordx4 v{VW+ii}, s[48:51], s63 offen offset:{ii*1024} lds")
        vm.issue(("w", s), 2)
    def read_frags(j):
        b = FBS[j % 3]
        c, kk, s, k2 = j >> 2, j & 3, j >> 1, j & 1
        L = []
        L.append(f"ds_read_b128 v[{b}:{b+3}], v{VAX+kk} offset:{(c%3)*16384}")
        for h in range(2):
            L.append(f"ds_read_b64_tr_b16 v[{b+8+h*2}:{b+9+h*2}], v{VAW} offset:{(s%4)*8192 + (16*k2+4*h)*256}")
        for h in range(2):
            L.append(f"ds_read_b64_tr_b16 v[{b+12+h*2}:{b+13+h*2}], v{VAW+1} offset:{(s%4)*8192 + (16*k2+4*h)*256}")
        L.append(f"ds_read_b128 v[{b+4}:{b+7}], v{VAX+kk} offset:{(c%3)*16384 + 4096}")
        return L
    def mfmas(j):
        b = FBS[j % 3]
        L = []
        for rt in range(2):
            for bi in range(2):
                a = ACC + (rt*2+bi)*16
                xa = f"v[{b+rt*4}:{b+rt*4+3}]"; wb = f"v[{b+8+bi*4}:{b+8+bi*4+3}]"
                if typ == "kv":
                    L.append(f"v_mfma_f32_32x32x16_bf16 v[{a}:{a+15}], {xa}, {wb}, v[{a}:{a+15}]")
                else:
                    L.append(f"v_mfma_f32_32x32x16_bf16 v[{a}:{a+15}], {wb}, {xa}, v[{a}:{a+15}]")
        return L
    groups = []
    for s_ in range(16):
        if s_ % 2 == 0:
            c = s_ // 2
            groups.append((dma_x, c, -1 if c < 3 else 2*(c-3)+2))
        groups.append((dma_w, s_, -1 if s_ < 4 else s_-4+1))
    gi = [0]
    def issue_groups(nmax, bar):
        n = 0
        while gi[0] < len(groups) and n < nmax and groups[gi[0]][2] <= bar:
            groups[gi[0]][0](groups[gi[0]][1]); gi[0] += 1; n += 1
    issue_groups(G1_PRE, -1)
    stamp(p, 3, "B")
    p.I(f"s_mov_b32 s64, {f32(EPS)}")
    for rt in range(2):
        for bi in range(2):
            a = ACC + (rt*2+bi)*16
            val = "s64" if (typ == "q" or bi == 0) else "0"
            for i in range(16):
                p.I(f"v_mov_b32 v{a+i}, {val}")
    p.I("v_mov_b32 v21, 0")
    stamp(p, 4, "B")
    stamp(p, 1)
    p.I(f"s_waitcnt vmcnt({vm.wait_for([('x',0),('w',0)])})\ns_barrier")
    stamp(p, 2)
    for x in read_frags(0) + read_frags(1): p.I(x)
    issue_groups(G1_PRE2, 0)
    curbar = 0
    polled = False
    for j in range(32):
        M = mfmas(j)
        R = read_frags(j + 2) if j + 2 < 32 else []
        if j % 2 == 0:
            p.I("s_waitcnt lgkmcnt(6)")
        elif j == 31:
            p.I("s_waitcnt lgkmcnt(0)")
        p.I(M[0])
        if j % 2 == 0 and j + 2 < 32:
            s1 = (j + 2) // 2
            n = vm.wait_for([("w", s1), ("x", (j + 2) >> 2)])
            p.I(f"s_waitcnt vmcnt({n}) lgkmcnt(0)\ns_barrier")
            curbar = s1
        for x in R[0:2]: p.I(x)
        p.I(M[1])
        for x in R[2:4]: p.I(x)
        p.I(M[2])
        for x in R[4:6]: p.I(x)
        p.I(M[3])
        if j in (7, 15, 23, 31): stamp(p, (j + 1) // 8, "C")
        issue_groups(2, curbar)
        if gi[0] == len(groups) and not polled and typ == "kv":
            p.I("buffer_load_dword v22, v21, s[56:59], 0 offen sc1")
            vm.issue("poll"); polled = True
    assert gi[0] == len(groups)
    stamp(p, 3)
    p.I(f"""
s_mov_b32 s66, {f32(L2E)}
s_mov_b32 s67, {f32(L2E)}
v_mov_b32 v16, {f32(-EPS*L2E)}
v_mov_b32 v17, {f32(-EPS*L2E)}
""")
    TMP = 128
    PK = 144
    if typ == "q":
        p.I(f"""
s_lshr_b32 s42, s13, 1
s_and_b32 s43, s13, 1
s_lshl_b32 s63, s8, 2
s_lshl_b32 s42, s42, 1
s_add_u32 s63, s63, s42
s_lshl_b32 s63, s63, 5
s_lshl_b32 s42, s14, 3
s_add_u32 s63, s63, s42
s_lshl_b32 s43, s43, 1
s_add_u32 s63, s63, s43
s_lshl_b32 s63, s63, 10
v_lshlrev_b32 v18, 4, v2
""")
        k = 0
        for rt in range(2):
            for bi in range(2):
                a = ACC + (rt*2+bi)*16
                o = PK + (k % 2) * 8
                phi_tile(p, a, 16, TMP, 66, 16, 64, o)
                p.I(f"s_add_u32 s65, s63, {rt*32768 + bi*4096}")
                p.I(f"buffer_store_dwordx4 v[{o}:{o+3}], v18, s[52:55], s65 offen")
                p.I(f"buffer_store_dwordx4 v[{o+4}:{o+7}], v18, s[52:55], s65 offen offset:1024")
                k += 1
        stamp(p, 4)
        stamp_flush(p, 0)
        p.I("s_endpgm")
    else:
        KVA = 176
        ZA = 192
        ONES = 208
        p.I(f"s_mov_b32 s42, 0x3f803f80")
        for i in range(4): p.I(f"v_mov_b32 v{ONES+i}, s42")
        for rt in range(2):
            ak = ACC + (rt*2+0)*16; av = ACC + (rt*2+1)*16
            ok = PK + rt*16; ov = ok + 8
            phi_tile(p, ak, 16, TMP, 66, 16, 64, ok)
            for i in range(0, 16, 2):
                p.I(f"v_cvt_pk_bf16_f32 v{ov+i//2}, v{av+i}, v{av+i+1}")
        first = True
        for rt in range(2):
            ok = PK + rt*16; ov = ok + 8
            for hf in range(2):
                c1 = "0" if first else f"v[{KVA}:{KVA+15}]"
                c2 = "0" if first else f"v[{ZA}:{ZA+15}]"
                p.I(f"v_mfma_f32_32x32x16_bf16 v[{KVA}:{KVA+15}], v[{ok+4*hf}:{ok+4*hf+3}], v[{ov+4*hf}:{ov+4*hf+3}], {c1}")
                p.I(f"v_mfma_f32_32x32x16_bf16 v[{ZA}:{ZA+15}], v[{ONES}:{ONES+3}], v[{ok+4*hf}:{ok+4*hf+3}], {c2}")
                first = False
        p.I("s_mov_b32 s42, 0xffff0000\ns_mov_b32 s43, 0xffff0000")
        SEL = 128
        for m in range(8):
            p.I(f"v_cndmask_b32 v{SEL+m}, v{KVA+m}, v{KVA+8+m}, s[42:43]")
        p.I(f"""
s_barrier
s_mul_i32 s63, s13, 2304
v_bfe_u32 v18, v2, 4, 1
v_lshlrev_b32 v18, 10, v18
v_lshrrev_b32 v19, 5, v2
v_lshl_add_u32 v18, v19, 9, v18
v_and_b32 v19, 15, v2
v_lshl_add_u32 v18, v19, 5, v18
v_add_u32 v18, s63, v18
ds_write_b128 v18, v[{SEL}:{SEL+3}]
ds_write_b128 v18, v[{SEL+4}:{SEL+7}] offset:16
v_lshlrev_b32 v19, 2, v2
v_add_u32 v19, s63, v19
v_and_b32 v20, 31, v2
v_lshlrev_b32 v20, 2, v20
v_add_u32 v20, s63, v20
ds_write_b32 v20, v{ZA} offset:2048
""")
        p.I("s_mov_b32 s43, 0\ns_branch L_g1_pchk")
        p.L("L_g1_poll")
        p.I("""
buffer_load_dword v22, v21, s[56:59], 0 offen sc1
s_add_u32 s43, s43, 1
""")
        p.L("L_g1_pchk")
        p.I("""
s_waitcnt vmcnt(0)
v_readfirstlane_b32 s42, v22
s_nop 3
s_lshr_b32 s65, s43, 16
s_or_b32 s42, s42, s65
s_cmp_eq_u32 s42, 0
s_cbranch_scc1 L_g1_poll
s_waitcnt lgkmcnt(0)
s_barrier
""")
        p.I(f"""
s_lshr_b32 s42, s13, 1
s_and_b32 s43, s13, 1
s_mul_i32 s63, s43, 2304
s_lshl_b32 s65, s42, 10
s_add_u32 s65, s65, s63
v_lshlrev_b32 v19, 2, v2
v_add_u32 v20, s65, v19
""")
        for i in range(4):
            p.I(f"ds_read_b32 v{24+i}, v20 offset:{256*i}")
            p.I(f"ds_read_b32 v{28+i}, v20 offset:{4608+256*i}")
        p.I(f"""
s_lshl_b32 s65, s42, 6
s_add_u32 s65, s65, s63
v_and_b32 v21, 15, v2
v_lshlrev_b32 v22, 2, v21
v_add_u32 v22, s65, v22
ds_read_b32 v32, v22 offset:2048
ds_read_b32 v33, v22 offset:{2048+4608}
""")
        p.I(f"""
s_lshl_b32 s63, s14, 2
s_lshl_b32 s43, s43, 1
s_add_u32 s63, s63, s43
s_add_u32 s63, s63, s42
s_mul_i32 s63, s63, {KVREC}
s_add_u32 s63, s63, {hex(WS_KV)}
v_bfe_u32 v22, v21, 2, 1
v_lshlrev_b32 v22, 5, v22
v_lshrrev_b32 v23, 3, v21
v_lshl_add_u32 v22, v23, 4, v22
v_and_b32 v23, 3, v21
v_lshl_add_u32 v22, v23, 2, v22
s_waitcnt lgkmcnt(0)
""")
        for i in range(4):
            p.I(f"v_add_f32 v{24+i}, v{24+i}, v{28+i}")
        p.I("v_add_f32 v32, v32, v33")
        for i in range(4):
            p.I(f"buffer_atomic_add_f32 v{24+i}, v19, s[52:55], s63 offen offset:{256*i}")
        p.I("""
s_mov_b64 exec, 0xffff
buffer_atomic_add_f32 v32, v22, s[52:55], s63 offen offset:1024
""")
        stamp(p, 4)
        stamp_flush(p, 0)
        p.I("s_endpgm")

def aux1(p):
    p.L("L_aux")
    p.I("""
s_mov_b32 s3, s2
v_lshrrev_b32 v1, 6, v0
v_and_b32 v2, 63, v0
s_nop 0
v_readfirstlane_b32 s13, v1
s_waitcnt lgkmcnt(0)
""")
    stamp(p, 1, "B")
    srd(p, 52, S_WS, WS_SIZE)
    srd(p, 44, S_LAR, 131072)
    srd(p, 48, S_AIM, 131072)
    srd(p, 56, S_CRE, 131072)
    srd(p, 60, S_CIM, 131072)
    srd(p, 64, S_LDT, 1024)
    srd(p, 68, S_DSK, 1024)
    srd(p, 76, S_DBG, 256)
    p.I("""
s_lshr_b32 s4, s13, 1
s_lshl_b32 s6, s3, 1
s_add_u32 s4, s4, s6
s_and_b32 s5, s13, 1
s_lshl_b32 s6, s4, 8
s_lshl_b32 s7, s5, 7
s_add_u32 s6, s6, s7
s_lshl_b32 s7, s4, 1
v_lshlrev_b32 v3, 1, v2
v_mov_b32 v4, 0
buffer_load_ushort v8, v3, s[44:47], s6 offen
buffer_load_ushort v9, v3, s[48:51], s6 offen
buffer_load_ushort v10, v3, s[56:59], s6 offen
buffer_load_ushort v11, v3, s[60:63], s6 offen
buffer_load_ushort v12, v4, s[64:67], s7 offen
buffer_load_ushort v13, v4, s[68:71], s7 offen
""")
    ntouch = 0
    if TOUCH:
        srd(p, 80, S_X, 0x200000)
        srd(p, 72, S_W, 1572864)
        p.I("""
s_and_b32 s8, s3, 7
s_lshr_b32 s9, s3, 3
s_lshl_b32 s9, s9, 2
s_add_u32 s9, s9, s13
s_lshr_b32 s10, s8, 1
s_and_b32 s8, s8, 1
s_lshl_b32 s10, s10, 9
s_lshl_b32 s11, s9, 2
s_add_u32 s10, s10, s11
v_min_u32 v5, 3, v2
v_add_u32 v5, s10, v5
v_lshlrev_b32 v5, 10, v5
s_and_b32 s10, s9, 1
s_mul_i32 s10, s10, 6
v_add_u32 v6, s10, v2
v_lshrrev_b32 v7, 2, v6
v_lshlrev_b32 v7, 10, v7
v_and_b32 v6, 3, v6
v_lshl_add_u32 v6, v6, 7, v7
s_lshr_b32 s9, s9, 1
s_mul_i32 s9, s9, 3072
s_lshl_b32 s8, s8, 9
s_add_u32 s9, s9, s8
v_add_u32 v6, s9, v6
s_mov_b64 exec, 0x3f
""")
        for c in range(8):
            p.I(f"buffer_load_dword v{224+c}, v5, s[80:83], 0 offen offset:{128*c}")
            p.I(f"s_mov_b32 s8, {c*64*3072}")
            p.I(f"buffer_load_dword v{232+c}, v6, s[72:75], s8 offen")
        p.I("s_mov_b64 exec, -1")
        ntouch = 16
    stamp(p, 2, "B")
    p.I("s_cmp_lg_u32 s3, 192\ns_cbranch_scc1 L_aux_nozero")
    p.I(f"""
v_lshlrev_b32 v5, 4, v0
v_mov_b32 v16, 0
v_mov_b32 v17, 0
v_mov_b32 v18, 0
v_mov_b32 v19, 0
""")
    srd_off(p, 80, S_WS, WS_KV, 32 * KVREC)
    for i in range(9):
        p.I(f"s_movk_i32 s8, {i*4096}" if i * 4096 < 32768 else f"s_mov_b32 s8, {i*4096}")
        p.I(f"buffer_store_dwordx4 v[16:19], v5, s[80:83], s8 offen sc0 sc1")
    p.I("""
s_waitcnt vmcnt(0)
s_barrier
v_mov_b32 v5, 1
s_mov_b64 s[8:9], exec
v_cmp_eq_u32 vcc, 0, v0
s_and_b64 exec, exec, vcc
s_cbranch_execz L_aux_zdone
buffer_store_dword v5, v4, s[76:79], 0 offen sc0 sc1
""")
    p.L("L_aux_zdone")
    p.I("s_mov_b64 exec, s[8:9]")
    p.L("L_aux_nozero")
    stamp(p, 1)
    p.I(f"""
s_waitcnt vmcnt({ntouch})
s_mov_b32 s8, {f32(L2E)}
v_lshlrev_b32 v8, 16, v8
v_lshlrev_b32 v9, 16, v9
v_lshlrev_b32 v10, 16, v10
v_lshlrev_b32 v11, 16, v11
v_lshlrev_b32 v12, 16, v12
v_lshlrev_b32 v13, 16, v13
v_mul_f32 v8, s8, v8
v_mul_f32 v12, s8, v12
v_exp_f32 v8, v8
v_exp_f32 v12, v12
v_cvt_pk_bf16_f32 v8, v8, v12
v_and_b32 v12, 0xffff0000, v8
v_lshlrev_b32 v8, 16, v8
v_mul_f32 v8, v8, v12
v_mul_f32 v8, {f32(-L2E)}, v8
v_mul_f32 v9, v9, v12
v_mul_f32 v9, 0.15915494309189535, v9
v_fract_f32 v9, v9
v_mul_f32 v10, v10, v12
v_mul_f32 v11, v11, v12
v_add_f32 v10, v10, v10
v_add_f32 v11, v11, v11
s_lshl_b32 s9, s13, 10
v_lshlrev_b32 v5, 2, v2
v_add_u32 v5, s9, v5
ds_write_b32 v5, v8
ds_write_b32 v5, v9 offset:256
ds_write_b32 v5, v10 offset:512
ds_write_b32 v5, v11 offset:768
v_lshrrev_b32 v6, 4, v2
v_lshlrev_b32 v6, 6, v6
v_add_u32 v6, s9, v6
v_and_b32 v7, 15, v2
v_cvt_f32_u32 v14, v7
v_cmp_eq_u32 vcc, 0, v2
s_cmp_eq_u32 s5, 0
s_cselect_b64 s[10:11], vcc, 0
v_cndmask_b32 v13, 0, v13, s[10:11]
s_waitcnt lgkmcnt(0)
""")
    PA, PB, PCR, PCI = 16, 32, 48, 64
    for arr, base in enumerate((PA, PB, PCR, PCI)):
        for q in range(4):
            p.I(f"ds_read_b128 v[{base+4*q}:{base+4*q+3}], v6 offset:{arr*256 + q*16}")
    D = 80
    FA = 100
    TM = 172
    for i in range(20): p.I(f"v_mov_b32 v{D+i}, 0")
    p.I("s_waitcnt lgkmcnt(0)")
    def pr(r): return f"v[{r}:{r+1}]"
    def chain(ks, pi, fb):
        n = 4*ks + 2*pi
        t = TM + pi*16
        Fr, Fi, X, Y, Hr, Hn, T1, T2 = t, t+2, t+4, t+6, t+8, t+10, t+12, t+14
        A = lambda r: fb + r*4 + 2*pi
        B = lambda r: fb + 20 + r*4 + 2*pi
        L = []
        L.append(f"v_pk_mul_f32 {pr(X)}, {pr(PA+n)}, v[14:15] op_sel_hi:[1,0]")
        L.append(f"v_pk_mul_f32 {pr(Y)}, {pr(PB+n)}, v[14:15] op_sel_hi:[1,0]")
        L.append(f"v_exp_f32 v{X}, v{X}")
        L.append(f"v_exp_f32 v{X+1}, v{X+1}")
        L.append(f"v_cos_f32 v{Fr}, v{Y}")
        L.append(f"v_cos_f32 v{Fr+1}, v{Y+1}")
        L.append(f"v_sin_f32 v{Fi}, v{Y}")
        L.append(f"v_sin_f32 v{Fi+1}, v{Y+1}")
        L.append(f"v_pk_mul_f32 {pr(Fr)}, {pr(Fr)}, {pr(X)}")
        L.append(f"v_pk_mul_f32 {pr(Fi)}, {pr(Fi)}, {pr(X)}")
        def cvtF(r):
            L.append(f"v_cvt_pk_bf16_f32 v{A(r)}, v{Fr}, v{Fr+1}")
            L.append(f"v_cvt_pk_bf16_f32 v{A(r)+1}, v{Fi}, v{Fi+1}")
        def cvtH(r):
            L.append(f"v_cvt_pk_bf16_f32 v{B(r)}, v{Hr}, v{Hr+1}")
            L.append(f"v_cvt_pk_bf16_f32 v{B(r)+1}, v{Hn}, v{Hn+1}")
        def sq():
            L.append(f"v_pk_mul_f32 {pr(T1)}, {pr(Fi)}, {pr(Fi)}")
            L.append(f"v_pk_add_f32 {pr(T2)}, {pr(Fr)}, {pr(Fr)}")
            L.append(f"v_pk_fma_f32 {pr(Fr)}, {pr(Fr)}, {pr(Fr)}, {pr(T1)} neg_lo:[0,0,1] neg_hi:[0,0,1]")
            L.append(f"v_pk_mul_f32 {pr(Fi)}, {pr(T2)}, {pr(Fi)}")
        cvtF(0); sq(); cvtF(1); sq(); cvtF(2); sq(); cvtF(3); sq(); cvtF(4)
        L.append(f"v_pk_mul_f32 {pr(T1)}, {pr(PCI+n)}, {pr(Fi)}")
        L.append(f"v_pk_mul_f32 {pr(T2)}, {pr(PCI+n)}, {pr(Fr)}")
        L.append(f"v_pk_fma_f32 {pr(Hr)}, {pr(PCR+n)}, {pr(Fr)}, {pr(T1)} neg_lo:[0,0,1] neg_hi:[0,0,1]")
        L.append(f"v_pk_fma_f32 {pr(Hn)}, {pr(PCR+n)}, {pr(Fi)}, {pr(T2)} neg_lo:[1,0,1] neg_hi:[1,0,1]")
        cvtH(0)
        def hmul():
            L.append(f"v_pk_mul_f32 {pr(T1)}, {pr(Hn)}, {pr(Fi)}")
            L.append(f"v_pk_mul_f32 {pr(T2)}, {pr(Hr)}, {pr(Fi)}")
            L.append(f"v_pk_fma_f32 {pr(Hr)}, {pr(Hr)}, {pr(Fr)}, {pr(T1)}")
            L.append(f"v_pk_fma_f32 {pr(Hn)}, {pr(Hn)}, {pr(Fr)}, {pr(T2)} neg_lo:[0,0,1] neg_hi:[0,0,1]")
        hmul(); cvtH(1); sq(); hmul(); cvtH(2); sq(); hmul(); cvtH(3)
        return L
    stamp(p, 2)
    stamp(p, 3, "B")
    for ks in range(4):
        fb = FA + (ks & 1) * 36
        c0 = chain(ks, 0, fb); c1 = chain(ks, 1, fb)
        for a, b in zip(c0, c1):
            p.I(a); p.I(b)
        for r in range(4):
            p.I(f"v_mfma_f32_16x16x32_bf16 v[{D+4*r}:{D+4*r+3}], v[{fb+4*r}:{fb+4*r+3}], v[{fb+20+4*r}:{fb+20+4*r+3}], v[{D+4*r}:{D+4*r+3}]")
        p.I(f"v_mfma_f32_16x16x32_bf16 v[{D+16}:{D+19}], v[{fb+16}:{fb+19}], v[{fb+32}:{fb+35}], v[{D+16}:{D+19}]")
        if ks == 0: stamp(p, 4, "B")
    stamp(p, 3)
    p.I(f"""
s_lshr_b32 s9, s13, 1
s_mul_i32 s9, s9, 5120
s_add_u32 s9, s9, 4096
v_lshlrev_b32 v3, 4, v2
v_add_u32 v3, s9, v3
v_add_f32 v{D}, v{D}, v13
s_cmp_eq_u32 s5, 0
s_cbranch_scc1 L_aux_fin
""")
    for r in range(5):
        p.I(f"ds_write_b128 v3, v[{D+4*r}:{D+4*r+3}] offset:{1024*r}")
    p.I("s_waitcnt lgkmcnt(0)\ns_barrier")
    p.I("s_cmp_ge_u32 s3, 192\ns_cbranch_scc1 L_aux_tr")
    stamp(p, 4)
    stamp_flush(p, 0)
    p.I("s_endpgm")
    p.L("L_aux_fin")
    p.I(f"""
s_mul_i32 s10, s4, 3072
s_add_u32 s10, s10, {hex(WS_KT)}
s_add_u32 s11, s10, 16
v_lshlrev_b32 v5, 6, v7
v_lshrrev_b32 v6, 4, v2
v_lshl_add_u32 v5, v6, 4, v5
v_mov_b32 v6, 0
v_mov_b32 v8, 0
s_barrier
""")
    for r in range(5):
        p.I(f"ds_read_b128 v[{16+4*r}:{16+4*r+3}], v3 offset:{1024*r}")
    p.I("s_waitcnt lgkmcnt(0)")
    for i in range(0, 20, 2):
        p.I(f"v_pk_add_f32 v[{D+i}:{D+i+1}], v[{D+i}:{D+i+1}], v[{16+i}:{16+i+1}]")
    p.I(f"""
buffer_store_dwordx4 v[{D}:{D+3}], v5, s[52:55], s11 offen
s_mov_b32 exec_lo, 0xff00ff00
s_mov_b32 exec_hi, 0xff00ff00
buffer_store_dwordx4 v[{D+4}:{D+7}], v5, s[52:55], s11 offen offset:512
buffer_store_dwordx4 v[{D+8}:{D+11}], v5, s[52:55], s11 offen offset:1024
buffer_store_dwordx4 v[{D+12}:{D+15}], v5, s[52:55], s11 offen offset:1536
s_mov_b32 exec_lo, 0
s_mov_b32 exec_hi, 0x8000
buffer_store_dword v{D+16}, v6, s[52:55], s11 offen offset:2560
buffer_store_dword v8, v6, s[52:55], s10 offen offset:12
s_mov_b64 exec, -1
""")
    p.I("s_cmp_ge_u32 s3, 192\ns_cbranch_scc1 L_aux_tr")
    stamp(p, 4)
    stamp_flush(p, 0)
    p.I("s_endpgm")
    p.L("L_aux_tr")
    srd(p, 72, S_U, 0x200000)
    R = 64
    p.I(f"""
s_sub_u32 s8, s3, 192
s_lshl_b32 s8, s8, 2
s_add_u32 s8, s8, s13
s_lshr_b32 s9, s8, 3
s_and_b32 s8, s8, 7
s_lshl_b32 s10, s9, 16
s_lshl_b32 s11, s8, 7
s_add_u32 s10, s10, s11
v_lshrrev_b32 v5, 3, v2
v_and_b32 v6, 7, v2
v_lshlrev_b32 v7, 13, v5
v_lshl_add_u32 v7, v6, 4, v7
v_add_u32 v14, 4096, v7
""")
    for i in range(8):
        p.I(f"buffer_load_dwordx4 v[{R+4*i}:{R+4*i+3}], v{7 if i < 4 else 14}, s[72:75], s10 offen offset:{(i%4)*1024}")
    p.I(f"""
s_lshl_b32 s10, s8, 18
s_lshl_b32 s11, s9, 7
s_add_u32 s10, s10, s11
s_add_u32 s10, s10, {hex(WS_UT)}
v_lshlrev_b32 v7, 15, v6
v_lshl_add_u32 v7, v5, 4, v7
s_mov_b32 s8, 0x05040100
s_mov_b32 s9, 0x07060302
s_waitcnt vmcnt(0)
""")
    O = 96
    for j in range(8):
        for tp in range(4):
            p.I(f"v_perm_b32 v{O+4*j+tp}, v{R+4*(2*tp+1)+j//2}, v{R+4*(2*tp)+j//2}, s{8 + (j & 1)}")
        p.I(f"s_add_u32 s11, s10, {j*4096}")
        p.I(f"buffer_store_dwordx4 v[{O+4*j}:{O+4*j+3}], v7, s[52:55], s11 offen")
    stamp(p, 4)
    stamp_flush(p, 0)
    p.I("s_endpgm")

def conv(p):
    p.L("L_conv")
    WST = 17696; R1O = 4224; U0O = 8448; U1O = 13088
    p.I(f"""
s_and_b32 s3, s2, 7
s_lshr_b32 s4, s2, 3
s_and_b32 s5, s4, 15
s_bfe_u32 s6, s4, 0x10004
s_lshl_b32 s7, s3, 6
s_lshl_b32 s5, s5, 2
s_add_u32 s7, s7, s5
v_lshrrev_b32 v1, 6, v0
v_and_b32 v2, 63, v0
s_nop 0
v_readfirstlane_b32 s13, v1
s_nop 3
s_add_u32 s8, s7, s13
s_mov_b32 s3, s7
s_mul_i32 s9, s13, {WST}
s_mul_i32 s10, s8, 3072
s_add_u32 s10, s10, {hex(WS_KT)}
s_lshl_b32 s12, s8, 12
s_add_u32 s12, s12, {hex(WS_UT)}
s_sub_u32 s14, s12, 4
v_lshlrev_b32 v3, 4, v2
s_waitcnt lgkmcnt(0)
""")
    stamp(p, 1, "B")
    srd(p, 52, S_WS, WS_SIZE)
    srd(p, 44, S_OUT, 0x400000)
    VA, VB, VY = 4, 5, 6
    p.I(f"""
v_and_b32 v8, 15, v2
v_lshrrev_b32 v9, 4, v2
v_and_b32 v10, 1, v2
v_lshrrev_b32 v11, 1, v8
s_movk_i32 s15, {R1O}
v_mul_lo_u32 v12, v10, s15
v_lshlrev_b32 v13, 3, v11
v_sub_u32 v12, v12, v13
v_lshl_add_u32 v12, v9, 4, v12
s_add_u32 s15, s9, {2*2044 - 64*63}
v_add_u32 v{VA}, s15, v12
s_movk_i32 s15, {U0O - U1O}
v_mul_lo_u32 v12, v10, s15
v_lshl_add_u32 v12, v11, 6, v12
v_lshl_add_u32 v12, v9, 4, v12
s_add_u32 s15, s9, {U1O + 64}
v_add_u32 v{VB}, s15, v12
v_lshlrev_b32 v12, 6, v11
v_lshl_add_u32 v12, v10, 2, v12
v_lshl_add_u32 v12, v9, 4, v12
v_add_u32 v{VY}, s9, v12
v_add_u32 v7, 1024, v{VY}
v_mov_b32 v16, 0
v_mov_b32 v17, 0
v_mov_b32 v18, 0
v_mov_b32 v19, 0
v_add_u32 v12, s9, v3
""")
    p.I("s_cmp_eq_u32 s6, 0\ns_cbranch_scc0 L_conv_b")
    for st, tiles in (("a", [7, 6, 1, 0]), ("b", [5, 4, 3, 2])):
        if st == "b": p.L("L_conv_b")
        tmax = max(tiles)
        k0 = 0 if tmax == 7 else 1
        nu = 4 if tmax == 7 else 3
        p.I(f"s_add_u32 m0, s9, 0")
        for i in range(3): p.I(f"buffer_load_dwordx4 v3, s[52:55], s10 offen offset:{1024*i} lds")
        p.I(f"s_add_u32 m0, s9, {U0O+512}")
        for i in range(nu): p.I(f"buffer_load_dwordx4 v3, s[52:55], s12 offen offset:{1024*i} lds")
        p.I(f"s_add_u32 m0, s9, {U1O+512}")
        for i in range(nu): p.I(f"buffer_load_dwordx4 v3, s[52:55], s14 offen offset:{1024*i} lds")
        stamp(p, 2, "B")
        p.I(f"""
s_mov_b32 exec_hi, 0
ds_write_b128 v12, v[16:19] offset:{U0O}
ds_write_b128 v12, v[16:19] offset:{U1O}
s_mov_b64 exec, -1
""")
        ACC = 20
        FR = 40
        for i in range(16): p.I(f"v_mov_b32 v{ACC+i}, 0")
        E = 40
        p.I(f"""
s_add_u32 s15, s9, 16
v_lshlrev_b32 v8, 2, v2
v_sub_u32 v8, {575*4}, v8
v_add_u32 v8, s15, v8
v_lshlrev_b32 v9, 3, v2
v_sub_u32 v9, 2040, v9
v_add_u32 v9, s15, v9
v_lshlrev_b32 v10, 4, v2
v_sub_u32 v10, 1516, v10
v_add_u32 v10, s15, v10
v_lshlrev_b32 v11, 5, v2
v_sub_u32 v11, 2012, v11
v_add_u32 v11, s15, v11
s_mov_b32 s6, 0xaaaaaaaa
s_mov_b32 s7, 0xaaaaaaaa
s_mov_b32 s4, 0x80000000
s_mov_b32 s5, 0
""")
        stamp(p, 1)
        p.I(f"s_waitcnt vmcnt({2*nu})")
        if k0 == 0: p.I(f"ds_read2_b32 v[{E}:{E+1}], v8 offset0:64 offset1:65")
        p.I(f"""
ds_read2_b32 v[{E+4}:{E+5}], v8 offset0:0 offset1:1
ds_read_b64 v[{E+8}:{E+9}], v9
ds_read_b32 v{E+10}, v9 offset:8
s_mov_b32 exec_hi, 0
ds_read_b128 v[{E+12}:{E+15}], v10 offset:4
ds_read_b32 v{E+27}, v10 offset:20
ds_read_b32 v{E+16}, v10
s_mov_b32 exec_lo, 0
s_mov_b32 exec_hi, -1
ds_read_b128 v[{E+20}:{E+23}], v11 offset:4
ds_read_b128 v[{E+24}:{E+27}], v11 offset:20
ds_read_b32 v{E+19}, v11
s_mov_b32 exec_lo, -1
s_mov_b32 exec_hi, 0
s_waitcnt lgkmcnt(0)
v_cndmask_b32 v{E+19}, v{E+12}, v{E+16}, s[4:5]
v_mov_b32 v{E+20}, v{E+12}
v_mov_b32 v{E+21}, v{E+12}
v_mov_b32 v{E+22}, v{E+13}
v_mov_b32 v{E+23}, v{E+14}
v_mov_b32 v{E+24}, v{E+14}
v_mov_b32 v{E+25}, v{E+14}
v_mov_b32 v{E+26}, v{E+15}
s_mov_b32 exec_lo, 15
ds_write_b128 v12, v[16:19] offset:4096
ds_write_b128 v12, v[16:19] offset:{R1O+4096}
s_mov_b64 exec, -1
""")
        O = 72
        V = E + 20
        p.I(f"""
v_cvt_pk_bf16_f32 v{O}, v{V+7}, v{V+6}
v_cvt_pk_bf16_f32 v{O+1}, v{V+5}, v{V+4}
v_cvt_pk_bf16_f32 v{O+2}, v{V+3}, v{V+2}
v_cvt_pk_bf16_f32 v{O+3}, v{V+1}, v{V}
v_cvt_pk_bf16_f32 v{O+4}, v{V+6}, v{V+5}
v_cvt_pk_bf16_f32 v{O+5}, v{V+4}, v{V+3}
v_cvt_pk_bf16_f32 v{O+6}, v{V+2}, v{V+1}
v_cvt_pk_bf16_f32 v{O+7}, v{V}, v{V-1}
ds_write_b128 v12, v[{O}:{O+3}] offset:{R1O+3072}
ds_write_b128 v12, v[{O+4}:{O+7}] offset:3072
""")
        A_, B_, C_ = E+8, E+9, E+10
        O = 80
        p.I(f"""
v_cvt_pk_bf16_f32 v{O}, v{C_}, v{C_}
v_cvt_pk_bf16_f32 v{O+1}, v{B_}, v{B_}
v_cvt_pk_bf16_f32 v{O+2}, v{B_}, v{A_}
v_cvt_pk_bf16_f32 v{O+3}, v{A_}, v{A_}
v_cvt_pk_bf16_f32 v{O+4}, v{C_}, v{B_}
v_mov_b32 v{O+5}, v{O+1}
v_mov_b32 v{O+6}, v{O+3}
v_mov_b32 v{O+7}, v{O+3}
ds_write_b128 v12, v[{O}:{O+3}] offset:{R1O+2048}
ds_write_b128 v12, v[{O+4}:{O+7}] offset:2048
""")
        for c in range(1, k0 - 1, -1):
            lo, hi = E + 4*c, E + 4*c + 1
            X = E + 4*c + 2
            o1, o0 = 88 + 8*c, 92 + 8*c
            p.I(f"""
v_cndmask_b32 v{X}, v{hi}, v{lo}, s[6:7]
v_cvt_pk_bf16_f32 v{o1}, v{hi}, v{hi}
v_cvt_pk_bf16_f32 v{o1+2}, v{lo}, v{lo}
v_cvt_pk_bf16_f32 v{o1+1}, v{hi}, v{X}
v_cvt_pk_bf16_f32 v{o0+1}, v{X}, v{lo}
v_mov_b32 v{o1+3}, v{o1+2}
v_mov_b32 v{o0}, v{o1}
v_mov_b32 v{o0+2}, v{o1+2}
v_mov_b32 v{o0+3}, v{o1+2}
ds_write_b128 v12, v[{o1}:{o1+3}] offset:{R1O+1024*c}
ds_write_b128 v12, v[{o0}:{o0+3}] offset:{1024*c}
""")
        p.I(f"""
s_waitcnt vmcnt(0)
s_mov_b64 exec, 1
ds_write_b32 v12, v16 offset:{U1O+512}
s_mov_b64 exec, -1
s_waitcnt lgkmcnt(0)
""")
        nfr = tmax + 1
        def reads(phi):
            b = FR + (phi & 1) * 64
            L = []
            for i in range(nfr):
                m = tmax - i
                bp = phi + 8 * i
                L.append(f"ds_read_b64 v[{b+4*i}:{b+4*i+1}], v{VA} offset:{64*(63-bp)}")
                L.append(f"ds_read_b64 v[{b+4*i+2}:{b+4*i+3}], v{VA} offset:{64*(63-bp)+8}")
                L.append(f"ds_read_b128 v[{b+32+4*m}:{b+32+4*m+3}], v{VB} offset:{512*m + 64*(7-phi)}")
            return L
        def mf(phi):
            b = FR + (phi & 1) * 64
            L = []
            for ti, T in enumerate(tiles):
                for i in range(T + 1):
                    a = ACC + 4*ti
                    L.append(f"v_mfma_f32_16x16x32_bf16 v[{a}:{a+3}], v[{b+4*i}:{b+4*i+3}], v[{b+32+4*(T-i)}:{b+32+4*(T-i)+3}], v[{a}:{a+3}]")
            return L
        stamp(p, 2)
        for r in reads(0): p.I(r)
        for phi in range(8):
            p.I("s_waitcnt lgkmcnt(0)")
            rl = reads(phi + 1) if phi < 7 else []
            ml = mf(phi)
            ri = 0
            for m in ml:
                p.I(m)
                for _ in range(2):
                    if ri < len(rl):
                        p.I(rl[ri]); ri += 1
            assert ri == len(rl)
            if phi in (1, 3, 5, 7): stamp(p, (phi + 1) // 2, "C")
        stamp(p, 3)
        for ti in range(4):
            a = ACC + 4*ti
            p.I(f"v_cvt_pk_bf16_f32 v{40+2*ti}, v{a}, v{a+1}")
            p.I(f"v_cvt_pk_bf16_f32 v{41+2*ti}, v{a+2}, v{a+3}")
        for ti in range(4):
            va = VY if ti < 2 else 7
            o = (ti & 1) * 128
            p.I(f"ds_write2_b32 v{va}, v{40+2*ti}, v{41+2*ti} offset0:{o} offset1:{o+2}")
        p.I(f"""
s_movk_i32 s15, {tiles[0]}
s_cmp_eq_u32 s13, 1
s_cselect_b32 s15, {tiles[1]}, s15
s_cmp_eq_u32 s13, 2
s_cselect_b32 s15, {tiles[2]}, s15
s_cmp_eq_u32 s13, 3
s_cselect_b32 s15, {tiles[3]}, s15
s_lshl_b32 s15, s15, 19
s_lshl_b32 s7, s3, 1
s_add_u32 s15, s15, s7
s_add_u32 s15, s15, 1024
v_lshlrev_b32 v8, 3, v0
v_lshlrev_b32 v9, 13, v2
v_add_u32 v10, 4096, v9
s_mov_b32 s8, 0x05040100
s_mov_b32 s9, 0x07060302
s_waitcnt lgkmcnt(0)
s_barrier
""")
        for c in range(4):
            p.I(f"ds_read_b64 v[{48+2*c}:{49+2*c}], v8 offset:{c*WST}")
        p.I("s_waitcnt lgkmcnt(0)")
        for t in range(4):
            d = t >> 1; sel = 8 + (t & 1)
            p.I(f"v_perm_b32 v{56+2*t}, v{50+d}, v{48+d}, s{sel}")
            p.I(f"v_perm_b32 v{57+2*t}, v{54+d}, v{52+d}, s{sel}")
            p.I(f"buffer_store_dwordx2 v[{56+2*t}:{57+2*t}], v{9 if t < 2 else 10}, s[44:47], s15 offen offset:{(t&1)*2048}")
        stamp(p, 4)
        stamp_flush(p, 1)
        p.I("s_endpgm")

def gemm2(p):
    p.L("L_g2")
    KVL = 49152
    p.I(f"""
s_sub_u32 s2, s2, 256
s_and_b32 s3, s2, 7
s_lshr_b32 s4, s2, 3
s_and_b32 s5, s4, 3
s_lshl_b32 s3, s3, 2
s_add_u32 s3, s3, s5
s_lshr_b32 s4, s4, 2
v_lshrrev_b32 v1, 6, v0
v_and_b32 v2, 63, v0
s_nop 0
v_readfirstlane_b32 s13, v1
s_nop 3
s_and_b32 s5, s13, 1
s_lshr_b32 s6, s13, 1
v_lshlrev_b32 v3, 4, v0
v_lshlrev_b32 v4, 4, v2
s_waitcnt lgkmcnt(0)
""")
    stamp(p, 1, "B")
    srd(p, 52, S_WS, WS_SIZE)
    srd_off(p, 56, S_WS, WS_KV, 32 * KVREC)
    srd(p, 44, S_OUT, 0x400000)
    srd(p, 48, S_WO, 0x80000)
    vm = VM()
    KVT = 128
    for i in range(9):
        p.I(f"s_mov_b32 s7, {i*4096}")
        p.I(f"buffer_load_dwordx4 v[{KVT+4*i}:{KVT+4*i+3}], v3, s[56:59], s7 offen")
    vm.issue("kv", 9)
    stamp(p, 2, "B")
    PQ = 64
    p.I(f"""
s_lshl_b32 s14, s3, 1
s_add_u32 s14, s14, s5
s_lshl_b32 s14, s14, 5
s_lshl_b32 s8, s6, 4
s_add_u32 s14, s14, s8
s_lshl_b32 s14, s14, 10
""")
    def pqload(st):
        p.I(f"s_add_u32 s7, s14, {4096*st}")
        for hl in range(4):
            h = 4*st + hl
            p.I(f"buffer_load_dwordx4 v[{PQ+4*h}:{PQ+4*h+3}], v4, s[52:55], s7 offen offset:{hl*1024}")
        vm.issue(("pq", st), 4)
    p.I(f"""
s_lshl_b32 s7, s6, 8
s_lshl_b32 s8, s5, 5
s_add_u32 s7, s7, s8
s_lshl_b32 s7, s7, 10
s_lshl_b32 s8, s4, 7
s_add_u32 s7, s7, s8
v_lshrrev_b32 v8, 3, v2
v_lshlrev_b32 v8, 10, v8
v_add_u32 v8, s7, v8
v_and_b32 v9, 7, v2
v_bfe_u32 v10, v2, 4, 1
v_lshlrev_b32 v10, 2, v10
v_xor_b32 v9, v9, v10
v_lshl_add_u32 v5, v9, 4, v8
s_lshl_b32 s8, s6, 13
s_lshl_b32 s9, s5, 12
s_add_u32 s9, s9, s8
""")
    def dma(st):
        base = st * 16384
        p.I(f"s_add_u32 m0, s9, {base}")
        for ii in range(4):
            p.I(f"s_mov_b32 s7, {st*65536 + ii*7168}")
            p.I(f"buffer_load_dwordx4 v5, s[48:51], s7 offen offset:{ii*1024} lds")
        vm.issue(("wo", st), 4)
    pqload(0); dma(0)
    stamp(p, 3, "B")
    p.I(f"""
v_bfe_u32 v8, v2, 2, 2
v_lshrrev_b32 v9, 5, v2
v_lshl_add_u32 v9, v9, 2, v8
v_lshlrev_b32 v9, 7, v9
v_lshrrev_b32 v8, 1, v8
v_lshl_add_u32 v9, v8, 6, v9
v_bfe_u32 v8, v2, 4, 1
v_lshl_add_u32 v9, v8, 5, v9
v_and_b32 v8, 3, v2
v_lshl_add_u32 v9, v8, 3, v9
v_add_u32 v6, s8, v9
v_xor_b32 v7, 64, v6
v_lshrrev_b32 v9, 5, v2
v_and_b32 v8, 15, v2
v_lshl_add_u32 v8, v9, 4, v8
v_lshlrev_b32 v8, 4, v8
v_lshlrev_b32 v9, 4, v9
v_add_u32 v9, 512, v9
s_mov_b32 s10, 0xffff0000
s_mov_b32 s11, 0xffff0000
v_cndmask_b32 v11, v8, v9, s[10:11]
s_mul_i32 s7, s6, {16*544}
s_add_u32 s7, s7, {KVL}
v_add_u32 v11, s7, v11
v_lshlrev_b32 v12, 3, v0
v_add_u32 v12, {KVL}, v12
""")
    ACC = 16
    for i in range(32): p.I(f"v_mov_b32 v{ACC+i}, 0")
    stamp(p, 1)
    for i in range(9):
        p.I(f"s_waitcnt vmcnt({len(vm.q) - 1 - i})")
        r = KVT + 4*i
        p.I(f"v_cvt_pk_bf16_f32 v{r}, v{r}, v{r+1}\nv_cvt_pk_bf16_f32 v{r+1}, v{r+2}, v{r+3}")
        p.I(f"ds_write_b64 v12, v[{r}:{r+1}] offset:{2048*i}")
    stamp(p, 4, "B")
    pqload(1); dma(1)
    p.I("s_waitcnt lgkmcnt(0)\ns_barrier")
    KZ = 128
    for h in range(16):
        p.I(f"ds_read_b128 v[{KZ+4*h}:{KZ+4*h+3}], v11 offset:{544*h}")
        if h == 7: p.I("s_waitcnt lgkmcnt(4)")
    pqload(2); dma(2)
    OD = 192
    WF = 224
    OF = 48
    RC = 56
    p.I(f"s_mov_b32 s12, {f32(EPS)}")
    def omfma(h):
        d = OD + (h & 1) * 16
        return f"v_mfma_f32_32x32x16_bf16 v[{d}:{d+15}], v[{KZ+4*h}:{KZ+4*h+3}], v[{PQ+4*h}:{PQ+4*h+3}], 0"
    def wreads(h):
        st, hl = h // 4, h % 4
        base = st * 16384
        b = WF + (h & 1) * 8
        for cti in range(2):
            for jj in range(2):
                r = b + cti*4 + jj*2
                p.I(f"ds_read_b64_tr_b16 v[{r}:{r+1}], v{6+cti} offset:{base + (16*hl + 8*jj)*128}")
    def oscale(h):
        d = OD + (h & 1) * 16
        o = OF + (h & 1) * 4
        L = [f"v_add_f32 v{RC}, s12, v{d+8}", f"v_rcp_f32 v{RC}, v{RC}"]
        for i in range(0, 8, 2):
            L.append(f"v_mul_f32 v{d+i}, v{d+i}, v{RC}")
            L.append(f"v_mul_f32 v{d+i+1}, v{d+i+1}, v{RC}")
            L.append(f"v_cvt_pk_bf16_f32 v{o+i//2}, v{d+i}, v{d+i+1}")
        return L
    def main(h, cti):
        b = WF + (h & 1) * 8
        o = OF + (h & 1) * 4
        a = ACC + cti*16
        return f"v_mfma_f32_32x32x16_bf16 v[{a}:{a+15}], v[{b+cti*4}:{b+cti*4+3}], v[{o}:{o+3}], v[{a}:{a+15}]"
    p.I(f"s_waitcnt vmcnt({vm.wait_for([('wo',0),('pq',0)])}) lgkmcnt(0)\ns_barrier")
    stamp(p, 2)
    p.I(omfma(0)); p.I(omfma(1))
    wreads(0)
    pqload(3); dma(3)
    for x in oscale(0): p.I(x)
    for h in range(16):
        if h + 1 < 16:
            if (h + 1) % 4 == 0:
                p.I(f"s_waitcnt vmcnt({vm.wait_for([('wo',(h+1)//4)])})\ns_barrier")
            wreads(h + 1)
            p.I("s_waitcnt lgkmcnt(4)")
        else:
            p.I("s_waitcnt lgkmcnt(0)")
        sc = oscale(h + 1) if h + 1 < 16 else []
        if h + 2 < 16:
            if (h + 2) % 4 == 0:
                p.I(f"s_waitcnt vmcnt({vm.wait_for([('pq',(h+2)//4)])})")
            p.I(omfma(h + 2))
        for x in sc[:5]: p.I(x)
        p.I(main(h, 0))
        for x in sc[5:10]: p.I(x)
        p.I(main(h, 1))
        for x in sc[10:]: p.I(x)
        if h in (3, 7, 11, 15): stamp(p, (h + 1) // 4, "C")
    stamp(p, 3)
    p.I(f"""
s_lshl_b32 s7, s13, 12
v_add_u32 v8, s7, v4
s_xor_b32 s7, s7, 8192
v_add_u32 v9, s7, v4
s_cmp_eq_u32 s6, 0
s_cbranch_scc1 L_g2_k0
""")
    for kh in (1, 0):
        if kh == 0: p.L("L_g2_k0")
        keep = ACC + kh*16; send = ACC + (1-kh)*16
        for i in range(4):
            p.I(f"ds_write_b128 v8, v[{send+4*i}:{send+4*i+3}] offset:{1024*i}")
        p.I(f"""
s_lshl_b32 s7, s3, 6
s_lshl_b32 s10, s5, 5
s_add_u32 s7, s7, s10
s_lshl_b32 s7, s7, 11
s_lshl_b32 s10, s4, 7
s_add_u32 s7, s7, s10
s_add_u32 s7, s7, {kh*64}
v_and_b32 v10, 31, v2
v_lshlrev_b32 v10, 11, v10
v_lshrrev_b32 v11, 5, v2
v_lshl_add_u32 v10, v11, 4, v10
s_waitcnt lgkmcnt(0)
s_barrier
""")
        for i in range(4):
            p.I(f"ds_read_b128 v[{64+4*i}:{64+4*i+3}], v9 offset:{1024*i}")
        p.I("s_waitcnt lgkmcnt(0)")
        for i in range(0, 16, 2):
            p.I(f"v_pk_add_f32 v[{keep+i}:{keep+i+1}], v[{keep+i}:{keep+i+1}], v[{64+i}:{64+i+1}]")
        for i in range(0, 16, 2):
            p.I(f"v_cvt_pk_bf16_f32 v{80+i//2}, v{keep+i}, v{keep+i+1}")
        for jp in range(2):
            b = 80 + 4*jp
            p.I(f"v_permlane32_swap_b32 v{b}, v{b+2}\nv_permlane32_swap_b32 v{b+1}, v{b+3}")
            p.I(f"buffer_store_dwordx4 v[{b}:{b+3}], v10, s[44:47], s7 offen offset:{32*jp}")
        stamp(p, 4)
        stamp_flush(p, 1)
        p.I("s_endpgm")

HDR = """; generated by gen.py  (hand-designed CDNA4 kernels: K1 = QKV GEMM + S4D kernel generation, K2 = out GEMM + causal conv)
; @launch kernel=k1_kernel grid=(448,1,1) block=(256,1,1) lds=81920
; @launch kernel=k2_kernel grid=(512,1,1) block=(256,1,1) lds=81920
.amdgcn_target "amdgcn-amd-amdhsa--gfx950"
.text
"""
def kd(name, vg):
    return f"""
.amdhsa_kernel {name}
  .amdhsa_next_free_vgpr {vg}
  .amdhsa_next_free_sgpr {102 if STAMP else 96}
  .amdhsa_accum_offset {vg}
  .amdhsa_group_segment_fixed_size 0
  .amdhsa_kernarg_size 104
  .amdhsa_user_sgpr_count 2
  .amdhsa_user_sgpr_kernarg_segment_ptr 1
  .amdhsa_system_sgpr_workgroup_id_x 1
.end_amdhsa_kernel
"""
def build():
    out = HDR
    p = Prog()
    p.raw(".globl k1_kernel\n.p2align 8\n.type k1_kernel,@function\nk1_kernel:")
    p.I("s_cmp_ge_u32 s2, 448\ns_cbranch_scc1 L_k1_exit")
    load_args(p)
    p.I("s_cmp_ge_u32 s2, 256\ns_cbranch_scc1 L_g1")
    aux1(p)
    gemm1(p)
    p.L("L_k1_exit"); p.I("s_endpgm")
    p.raw(".globl k2_kernel\n.p2align 8\n.type k2_kernel,@function\nk2_kernel:")
    p.I("s_cmp_ge_u32 s2, 512\ns_cbranch_scc1 L_k2_exit")
    load_args(p)
    p.I("s_cmp_ge_u32 s2, 256\ns_cbranch_scc1 L_g2")
    conv(p)
    gemm2(p)
    p.L("L_k2_exit"); p.I("s_endpgm")
    out += p.render()
    out += '.section .rodata,"a"\n.p2align 6\n' + kd("k1_kernel", 256) + ".p2align 6\n" + kd("k2_kernel", 256)
    return out
if __name__ == "__main__":
    if "--stamp" in sys.argv:
        STAMP = True; sys.argv.remove("--stamp")
    for a in list(sys.argv):
        if a.startswith("--set="):
            STAMP_SET = a[6:]; sys.argv.remove(a)
        elif a.startswith("-D"):
            k_, v_ = a[2:].split("="); globals()[k_] = int(v_); sys.argv.remove(a)
    dst = sys.argv[1] if len(sys.argv) > 1 else "k.s"
    open(dst, "w").write(build())
    print("wrote", dst)
```
